```python
import torch

def _softmax(x, axis=-1):
    return torch.softmax(x, dim=axis)
def _gelu(x):
    return torch.nn.functional.gelu(x, approximate="tanh")
def _silu(x):
    return torch.nn.functional.silu(x)
def _sigmoid(x):
    return torch.sigmoid(x)
def _layernorm(x, axis=-1, eps=1e-5):
    m = x.mean(dim=axis, keepdim=True)
    v = x.var(dim=axis, keepdim=True, unbiased=False)
    return (x - m) / torch.sqrt(v + eps)
def _scatter_add(tgt, idx, src, axis=0):
    return tgt.clone().index_add_(axis, idx, src)
def _segment_sum(src, seg, n):
    out = torch.zeros((n,) + src.shape[1:], dtype=src.dtype)
    return out.index_add_(0, seg, src)
def _pad(x, pw):
    flat = tuple(v for pair in reversed(pw) for v in pair)
    return torch.nn.functional.pad(x, flat)

kernel_name = 'recurrent_scan__mha_block_cached__glu_gated_glu__prompt'

def setup_inputs():

    _w = (lambda a: (lambda t: t.to(torch.bfloat16) if t.is_floating_point() else t)(torch.as_tensor(a)))
    def _A_setup():
        B, Sq, D = 1, 2048, 448
        H, Sk, Dh = 16, 2048, 256
        return {
            "x": _w((lambda *s: torch.randn(*s, dtype=torch.bfloat16) * 0.05)(B, Sq, D)),
            "k_cache": _w((lambda *s: torch.randn(*s, dtype=torch.bfloat16) * 1.6)(B, H, Sk, Dh)),
            "v_cache": _w((lambda *s: torch.randn(*s, dtype=torch.bfloat16) * 0.2)(B, H, Sk, Dh)),
            "wq": _w((lambda *s: torch.randn(*s, dtype=torch.bfloat16) * 1.6)(D, H * Dh) * (D ** -0.5)),
            "wo": _w((lambda *s: torch.randn(*s, dtype=torch.bfloat16) * 0.2)(H * Dh, D) * ((H * Dh) ** -0.5)),
        }
    _A_in = _A_setup()

    def _B_setup():
        B, S, D, F = 1, 2048, 448, 1792
        return {
            "x": _w((lambda *s: torch.randn(*s, dtype=torch.bfloat16) * 0.05)(B, S, D)),
            "w_gate": _w((lambda *s: torch.randn(*s, dtype=torch.bfloat16) * 0.2)(D, F)),
            "w_up": _w((lambda *s: torch.randn(*s, dtype=torch.bfloat16) * 0.1)(D, F)),
            "w_down": _w((lambda *s: torch.randn(*s, dtype=torch.bfloat16) * 0.1)(F, D)),
        }
    _B_in = _B_setup()

    return {
        "A_x": _A_in["x"],
        "A_k_cache": _A_in["k_cache"],
        "A_v_cache": _A_in["v_cache"],
        "A_wq": _A_in["wq"],
        "A_wo": _A_in["wo"],
        "B_x": _B_in["x"],
        "B_w_gate": _B_in["w_gate"],
        "B_w_up": _B_in["w_up"],
        "B_w_down": _B_in["w_down"],
    }

def reference(A_x, A_k_cache, A_v_cache, A_wq, A_wo, B_x, B_w_gate, B_w_up, B_w_down):
    def _A_ref(x, k_cache, v_cache, wq, wo):
        B, Sq, D = x.shape
        H, Dh = 16, 256
        q = (lambda x, *d: x.permute(*d))((x @ wq).reshape(B, Sq, H, Dh), 0, 2, 1, 3)
        scores = torch.einsum("bhqd,bhkd->bhqk", q, k_cache) * (Dh ** -0.5)
        p = _softmax(scores, axis=-1)
        o = torch.einsum("bhqk,bhkd->bhqd", p, v_cache)
        return (lambda x, *d: x.permute(*d))(o, 0, 2, 1, 3).reshape(B, Sq, H * Dh) @ wo

    def _B_ref(x, w_gate, w_up, w_down):
        g = torch.einsum("bsd,df->bsf", x, w_gate)
        u = torch.einsum("bsd,df->bsf", x, w_up)
        h = _sigmoid(g) * u
        return torch.einsum("bsf,fd->bsd", h, w_down)

    x = A_x
    xn = _layernorm(x, axis=-1)
    s = _A_ref(xn, A_k_cache, A_v_cache, A_wq, A_wo)
    g = _silu(_B_ref(xn, B_w_gate, B_w_up, B_w_down))
    return x + s * g
```

```python
import re, itertools

_ids = itertools.count(1)


class Val:
    def __init__(self, f, base, n=1, name="", vid=None):
        self.f, self.base, self.n, self.name = f, base, n, name
        self.id = vid if vid is not None else next(_ids)

    def __getitem__(self, k):
        if isinstance(k, slice):
            a = k.start or 0
            b = self.n if k.stop is None else k.stop
            assert 0 <= a < b <= self.n, (self.name, k)
            return Val(self.f, self.base + a, b - a, self.name, self.id)
        assert 0 <= k < self.n, (self.name, k)
        return Val(self.f, self.base + k, 1, self.name, self.id)

    def regs(self):
        return [(self.f, self.base + i) for i in range(self.n)]

    def new(self, name=None):
        return Val(self.f, self.base, self.n, name or self.name)

    def __str__(self):
        if self.n == 1:
            return f"{self.f}{self.base}"
        return f"{self.f}[{self.base}:{self.base + self.n - 1}]"


TRANS = ("v_exp_f32", "v_log_f32", "v_rcp_f32", "v_rsq_f32", "v_sqrt_f32")
_reg_re = re.compile(r"^(-|abs\()?([vas])(\d+)\)?$")
_rng_re = re.compile(r"^([vas])\[(\d+):(\d+)\]$")


def _opregs(op):
    op = op.strip()
    m = _reg_re.match(op)
    if m:
        return [(m.group(2), int(m.group(3)))]
    m = _rng_re.match(op)
    if m:
        return [(m.group(1), i) for i in range(int(m.group(2)), int(m.group(3)) + 1)]
    if op in ("vcc", "m0", "exec", "scc"):
        return [(op, 0)]
    return []


class I:
    def __init__(self, op, *args, mods="", tag=None, meta=None):
        self.op = op
        self.args = args
        self.mods = mods
        self.tag = tag
        self.meta = meta or {}
        self.text = op + (" " + ", ".join(str(a) for a in args) if args else "") + ((" " + mods) if mods else "")
        self._classify()

    def _classify(self):
        op, args = self.op, self.args
        nd = 1
        rw = False
        xr, xw = [], []
        if op.startswith("v_mfma"):
            k = "mfma"
        elif op.startswith("ds_read"):
            k = "ds"
        elif op.startswith("ds_write"):
            k = "ds"; nd = 0
        elif op.startswith("buffer_load") or op.startswith("global_load"):
            k = "vmem"
            if " lds" in (" " + self.mods):
                nd = 0; xr.append(("m0", 0))
        elif op.startswith("buffer_store") or op.startswith("global_store") or op.startswith("buffer_atomic"):
            k = "vmem"; nd = 0
        elif op.startswith("v_permlane"):
            k = "valu"; nd = 2; rw = True
        elif op.startswith("v_"):
            k = "trans" if op.replace("_e64", "").replace("_e32", "") in TRANS else "valu"
            if op.startswith("v_fmac") or op.startswith("v_dot2c"):
                rw = True
        elif op == "s_waitcnt":
            k = "wait"; nd = 0
        elif op == "s_barrier":
            k = "bar"; nd = 0
        elif op == "s_nop":
            k = "nop"; nd = 0
        elif op.startswith("s_cbranch") or op in ("s_branch", "s_endpgm", "s_setpc_b64"):
            k = "br"; nd = 0
            if "vcc" in op: xr.append(("vcc", 0))
            if "scc" in op: xr.append(("scc", 0))
        elif op.startswith("s_cmp"):
            k = "salu"; nd = 0; xw.append(("scc", 0))
        elif op.startswith("s_load") or op.startswith("s_mem"):
            k = "smem"
        elif op.endswith(":") or op.startswith("."):
            k = "label"; nd = 0
        elif op.startswith("s_"):
            k = "salu"
            if not (op.startswith("s_mov") or op.startswith("s_mul") or op.startswith("s_getpc") or op.startswith("s_setprio") or op.startswith("s_cselect")):
                xw.append(("scc", 0))
            if op.startswith("s_addc") or op.startswith("s_subb") or op.startswith("s_cselect"):
                xr.append(("scc", 0))
            if op.startswith("s_setprio"): nd = 0
        else:
            raise ValueError(op)
        self.kind = k
        self.wr, self.rd = list(xw), list(xr)
        self.wvals, self.rvals = [], []
        for i, a in enumerate(args):
            regs = a.regs() if isinstance(a, Val) else _opregs(str(a))
            if isinstance(a, Neg): regs = a.v.regs()
            v = a.v if isinstance(a, Neg) else a
            if i < nd:
                self.wr += regs
                if isinstance(v, Val): self.wvals.append(v)
                if rw:
                    self.rd += regs
                    if isinstance(v, Val) and not self.meta.get("norcheck"): self.rvals.append(v)
            else:
                self.rd += regs
                if isinstance(v, Val): self.rvals.append(v)
        if k == "mfma":
            self.D = set(self.wr)
            g = lambda a: set(a.regs() if isinstance(a, Val) else _opregs(str(a)))
            self.A, self.B, self.C = g(args[1]), g(args[2]), g(args[3])
            self.passes = 8 if "32x32" in op else 4
        self.wr, self.rd = set(self.wr), set(self.rd)

    def states(self):
        if self.kind == "nop": return int(self.args[0]) + 1
        if self.kind == "label": return 0
        return 1


class Neg:
    def __init__(self, v): self.v = v
    def __str__(self): return "-" + str(self.v)


_ORDER = {"wait": 0, "salu": 0, "bar": 0, "br": 0, "nop": 0, "label": 0, "smem": 0, "ds": 1, "vmem": 2, "valu": 3, "trans": 3}


class Prog:
    def __init__(self):
        self.m = []
        self.fill = {}
        self.raw = set()

    @property
    def g(self):
        return len(self.m)

    def mfma(self, ins):
        self.m.append(ins)
        return len(self.m) - 1

    def put(self, g, ins):
        self.fill.setdefault(max(g, -1), []).append(ins)

    def spread(self, items, g0, g1, skip=None):
        gs = [g for g in range(g0, g1) if not (skip and skip(g))]
        n = len(items)
        for i, it in enumerate(items):
            g = gs[min(len(gs) - 1, i * len(gs) // n)]
            for x in (it if isinstance(it, (list, tuple)) else [it]):
                self.put(g, x)

    def linear(self):
        out = []
        last = max([len(self.m) - 1] + list(self.fill))
        for g in range(-1, last + 1):
            if 0 <= g < len(self.m):
                self.m[g].gap = g
                out.append(self.m[g])
            f = self.fill.get(g, [])
            if g not in self.raw and g != -1 and g < len(self.m) - 1:
                s = sorted(range(len(f)), key=lambda i: (_ORDER[f[i].kind], i))
                for x in range(len(s)):
                    for y in range(x + 1, len(s)):
                        if s[x] > s[y]:
                            a, b = f[s[y]], f[s[x]]
                            if (a.wr & (b.rd | b.wr)) or (a.rd & b.wr):
                                raise RuntimeError(f"gap {g}: reordering conflict {a.text} / {b.text}")
                f = [f[i] for i in s]
            for x in f:
                x.gap = g
                out.append(x)
        return out


def insert_lgkm(lin, minage=5):
    out = []
    ds = []
    done = 0
    pend = {}
    for ins in lin:
        need = -1
        for r in (ins.rd | ins.wr):
            if r in pend and pend[r] >= done:
                need = max(need, pend[r])
        if ins.meta.get("lgkm0"):
            need = len(ds) - 1 if len(ds) > done else -1
        if need >= 0:
            pos = len(out)
            if ins.kind == "mfma":
                p = len(out)
                while p > 0 and out[p - 1].kind not in ("mfma", "label", "br"):
                    p -= 1
                nds_before = len(ds) - sum(1 for x in out[p:] if x.kind == "ds")
                if need < nds_before and p > 0 and out[p - 1].kind == "mfma":
                    pos = p
            nds = len(ds) - sum(1 for x in out[pos:] if x.kind == "ds")
            j = need
            while j + 1 < nds and ds[j + 1][0] <= ins.gap - minage:
                j += 1
            n = nds - 1 - j
            if n > 15:
                n = 15; j = nds - 1 - 15
                assert j >= need
            w = I("s_waitcnt", f"lgkmcnt({n})")
            w.gap = out[pos - 1].gap if pos > 0 else -1
            w.meta["ds_done"] = j + 1
            out.insert(pos, w)
            done = j + 1
        if ins.kind == "wait" and "lgkmcnt(0)" in ins.text:
            done = len(ds); ins.meta["ds_done"] = done
        if ins.kind == "ds":
            ins.ds_idx = len(ds)
            for r in ins.wr: pend[r] = len(ds)
            ds.append((ins.gap, ins.wr))
        out.append(ins)
    return out


def resolve_vm(lin):
    vm = []
    done = 0
    pend = {}
    out = []
    for ins in lin:
        if ins.kind == "wait" and "vm" in ins.meta:
            tags = ins.meta["vm"]
            idx = [i for i, t in enumerate(vm) if t in tags]
            if tags == "all": idx = list(range(len(vm)))
            last = max(idx) if idx else -1
            n = min(63, len(vm) - 1 - last)
            if last < done and not ins.meta.get("keep"):
                ins.meta["vm_done"] = done
                if ins.meta.get("drop_ok", True):
                    continue
            ins.text = f"s_waitcnt vmcnt({n})"
            done = max(done, len(vm) - n)
            ins.meta["vm_done"] = done
        else:
            for r in (ins.rd | ins.wr):
                if r in pend and pend[r] >= done and not ins.meta.get("touch"):
                    raise RuntimeError(f"vm load result not waited: {ins.text}")
        if ins.kind == "vmem":
            ins.vm_idx = len(vm)
            for r in ins.wr: pend[r] = len(vm)
            vm.append(ins.tag)
        out.append(ins)
    return out


def check_values(lin):
    own = {}
    for ins in lin:
        for v in ins.rvals:
            for r in v.regs():
                if own.get(r, (None,))[0] != v.id:
                    raise RuntimeError(f"value check: {ins.text} (gap {ins.gap}) expects {v.name}#{v.id} in {r}, found {own.get(r)}")
        wv = set()
        for v in ins.wvals:
            for r in v.regs():
                own[r] = (v.id, v.name); wv.add(r)
        for r in ins.wr:
            if r not in wv and r[0] in "va":
                own[r] = (None, "raw:" + ins.text)


def check_hazards(lin, fix=False):
    out = []
    probs = []
    W = 24
    for ins in lin:
        need = 0
        dist = 0
        for p in reversed(out[-W:]):
            req = 0
            isvalu = lambda x: x.kind in ("valu", "trans")
            if p.kind == "mfma":
                n = p.passes
                if ins.kind == "mfma":
                    if p.D & ins.C and not (p.D == ins.C and p.passes == ins.passes): req = max(req, n + 2)
                    if p.D & (ins.A | ins.B): req = max(req, n + 4)
                    if p.D & ins.D and not (p.D == ins.C): req = max(req, 0)
                elif isvalu(ins) or ins.kind in ("ds", "vmem"):
                    if p.D & (ins.rd | ins.wr): req = max(req, n + 4)
                    if isvalu(ins) and (p.C & ins.wr): req = max(req, n - 1)
            if isvalu(p):
                vw = {r for r in p.wr if r[0] in "va"}
                sw = {r for r in p.wr if r[0] in ("s", "vcc")}
                if ins.kind == "mfma" and vw & ins.rd: req = max(req, 2)
                if ins.op.startswith("v_permlane") and vw & ins.rd: req = max(req, 2)
                if ins.op.startswith("v_read") and vw & ins.rd: req = max(req, 1)
                if "dpp" in ins.op and vw & ins.rd: req = max(req, 2)
                if p.kind == "trans" and ins.kind == "valu" and vw & ins.rd: req = max(req, 1)
                if isvalu(ins) and sw & ins.rd: req = max(req, 2)
                if ins.kind == "vmem" and sw & ins.rd: req = max(req, 5)
                if ins.kind == "salu" and sw & ins.rd: req = max(req, 1)
            if p.kind == "salu" and ("m0", 0) in p.wr and ins.kind == "vmem" and ("m0", 0) in ins.rd: req = max(req, 1)
            if p.kind == "vmem" and "store_dwordx4" in p.op:
                data = set(p.args[0].regs()) if isinstance(p.args[0], Val) else set(_opregs(str(p.args[0])))
                if data & ins.wr: req = max(req, 2)
            if req > dist:
                need = max(need, req - dist)
                if not fix: probs.append(f"hazard: {p.text} -> {ins.text} needs {req}, has {dist} (gap {ins.gap})")
            dist += p.states()
        if need and fix:
            nop = I("s_nop", need - 1); nop.gap = ins.gap; nop.meta["fix"] = True
            probs.append(f"nop {need} before {ins.text} (gap {ins.gap})")
            out.append(nop)
        out.append(ins)
    return out, probs


def check_lds(lin):
    vm_done = 0; ds_done = 0
    pub_vm = 0; pub_ds = 0
    dma_last = {}
    rd_last = {}
    slot_unit = {}
    for ins in lin:
        if ins.kind == "wait":
            vm_done = max(vm_done, ins.meta.get("vm_done", 0)); ds_done = max(ds_done, ins.meta.get("ds_done", 0))
        if ins.kind == "bar":
            pub_vm, pub_ds = vm_done, ds_done
        if ins.kind == "vmem" and "unit" in ins.meta:
            u, s = ins.meta["unit"], ins.meta["slot"]
            if rd_last.get(s, -1) >= pub_ds:
                raise RuntimeError(f"LDS WAR: DMA of unit {u} into slot {s} (gap {ins.gap}) before readers were fenced")
            dma_last[u] = ins.vm_idx; slot_unit[s] = u
        if ins.kind == "ds" and "unit" in ins.meta:
            u, s = ins.meta["unit"], ins.meta["slot"]
            if slot_unit.get(s) != u:
                raise RuntimeError(f"LDS: read of unit {u} finds unit {slot_unit.get(s)} in slot {s} (gap {ins.gap})")
            if dma_last[u] >= pub_vm:
                raise RuntimeError(f"LDS RAW: read of unit {u} (gap {ins.gap}) before its DMA was published")
            rd_last[s] = ins.ds_idx


def gap_cost(lin):
    cost = {}
    cur = None; t = 0; prev = None
    def close():
        if cur is not None:
            tt = t
            cost[cur] = max(16, tt)
    for ins in lin:
        if ins.kind == "mfma":
            if cur is not None:
                tt = t + (4 if prev == "ds" else 0)
                cost[cur] = max(16, tt)
            cur = ins.gap; t = 4; prev = "mfma"
            continue
        if cur is None or ins.kind == "label": continue
        k = ins.kind
        if k in ("ds", "vmem", "valu", "trans"): t = max(t, 8)
        if k in ("ds", "vmem") and prev in ("valu", "trans"): t += 4
        t += {"trans": 8, "vmem": 8}.get(k, 4 * ins.states())
        if ins.op.startswith("v_permlane"): t += 4
        prev = k
    close()
    return cost
```

```python
import sys, struct
from asmlib import *

NAME = "recurrent_scan__mha_block_cached__glu_gated_glu__prompt"
OPT = dict(stamps=False)
for a in sys.argv[2:]:
    k, v = a.split("="); OPT[k] = int(v)

f2u = lambda x: struct.unpack("<I", struct.pack("<f", x))[0]
LOG2E = 1.4426950408889634
PART = 114688
PLANE = 16 * PART
DOFF = 16 * PLANE
LEAD = 11

sX, sG, sU, sWq, sWd, sK, sV, sWo, sP = [f"s[{b}:{b+3}]" for b in range(28, 64, 4)]
sHEAD, sQB, sW, sM4K, sM2K, sMQ, sOK, sOV = "s64 s65 s66 s67 s68 s69 s70 s71".split()
sTMP = ["s72", "s73", "s74", "s75"]
sCNT, sTHR, sRET = "s76", "s77", "s[78:79]"
sMASK = ["s[80:81]", "s[82:83]", "s[84:85]", "s[86:87]"]
sXQ = "s88"
sST = "s89"

V = lambda b, n=1, name="": Val("v", b, n, name)
A_ = lambda b, n=1, name="": Val("a", b, n, name)


def k1():
    P = Prog()
    pre = lambda *a, **k: P.put(-1, I(*a, **k))
    slow_sites = []
    stamp_n = [0]

    def stamp(g):
        if not OPT["stamps"]: return
        i = stamp_n[0]; stamp_n[0] += 1
        P.put(g, I("s_memtime", f"s[{4+2*i}:{5+2*i}]"))

    tid = V(0, 1, "tid")
    gq = [V(8 + j, 1, f"gq{j}") for j in range(8)]
    voffG, voffQ, voffDO, voffSt, kbase, vbase, voffKV0, dobase = [V(i, 1, n) for i, n in zip(range(0, 8), "voffG voffQ voffDO voffSt kbase vbase voffKV0 dobase".split())]
    st = [V(16 + i, 1, f"st{i}") for i in range(6)]
    T0 = 24
    XCB, GB = 32, 144

    pre("s_load_dwordx16", "s[4:19]", "s[0:1]", 0)
    pre("s_load_dwordx8", "s[20:27]", "s[0:1]", 64)
    pre("s_cmp_ge_u32", "s2", 256)
    pre("s_cbranch_scc1", "L_end")
    pre("s_getpc_b64", "s[90:91]")
    pre("L_pc0:")
    pre("v_lshlrev_b32", "v200", 7, "v0")
    pre("v_add_u32", "v201", 0x8000, "v200")
    pre("v_min_u32", "v201", "L_k1_last-L_pc0", "v201")
    pre("global_load_dword", "v202", "v200", "s[90:91]", tag="code")
    pre("global_load_dword", "v203", "v201", "s[90:91]", tag="code")
    L, Q15, G_, RR, CC, LH, LC, t1, t2, t3, KEY = [f"v{204+i}" for i in range(11)]
    pre("v_lshrrev_b32", t1, 6, "v0")
    pre("v_and_b32", L, 63, "v0")
    pre("v_readfirstlane_b32", sW, t1)
    pre("v_and_b32", Q15, 15, L)
    pre("v_lshrrev_b32", G_, 4, L)
    pre("v_lshrrev_b32", RR, 2, Q15)
    pre("v_and_b32", CC, 3, L)
    pre("v_lshrrev_b32", LH, 5, L)
    pre("v_and_b32", LC, 31, L)
    pre("s_and_b32", "s3", "s2", 7)
    pre("s_lshl_b32", "s3", "s3", 1)
    pre("s_bfe_u32", sHEAD, "s2", 0x10003)
    pre("s_add_u32", sHEAD, sHEAD, "s3")
    pre("s_lshr_b32", sQB, "s2", 4)
    pre("s_lshl_b32", sM4K, sW, 12)
    pre("s_lshl_b32", sM2K, sW, 11)
    pre("s_lshr_b32", "s92", sW, 1)
    pre("s_and_b32", "s93", sW, 1)
    pre("s_lshl_b32", "s94", "s92", 5)
    pre("s_lshl_b32", "s95", "s93", 3)
    pre("s_add_u32", "s94", "s94", "s95")
    pre("s_lshl_b32", sMQ, "s94", 8)
    pre("s_lshl_b32", "s95", sW, 5)
    pre("v_add_u32", t1, "s95", Q15)
    pre("v_mul_u32_u24", t1, 896, t1)
    pre("v_lshl_add_u32", "v216", G_, 4, t1)
    pre("s_mov_b32", sXQ, 16 * 896)
    pre("s_waitcnt", "lgkmcnt(0)")

    def srd(dst, ptr, mul_s, mul_c, nrec, sub=False):
        b = int(dst[2:dst.index(":")])
        pre("s_mul_i32", "s96", mul_s, mul_c)
        pre("s_add_u32", f"s{b}", f"s{ptr}", "s96")
        pre("s_addc_u32", f"s{b+1}", f"s{ptr+1}", 0)
        pre("s_and_b32", f"s{b+1}", f"s{b+1}", 0xffff)
        if sub: pre("s_sub_u32", f"s{b+2}", nrec, "s96")
        else: pre("s_mov_b32", f"s{b+2}", nrec)
        pre("s_mov_b32", f"s{b+3}", 0x20000)

    srd(sX, 4, sQB, 128 * 896, 128 * 896)
    xraw = {}
    for k in range(14):
        for qs in range(2):
            xraw[k, qs] = V(XCB + 8 * k + 4 * qs, 4, f"xraw{k}_{qs}")
            pre("buffer_load_dwordx4", xraw[k, qs], "v216", sX, sXQ if qs else 0, mods=f"offen offset:{64*k}", tag=("x", k, qs))
    srd(sG, 16, sHEAD, 224, 448 * 3584, sub=True)
    srd(sU, 18, sHEAD, 224, 448 * 3584, sub=True)
    pre("s_lshl_b32", "s95", "s93", 2)
    pre("v_or_b32", KEY, "s95", G_)
    pre("v_lshrrev_b32", t1, 1, Q15)
    pre("v_xor_b32", t1, t1, KEY)
    pre("v_and_b32", t2, 1, L)
    pre("v_lshlrev_b32", t2, 4, t2)
    pre("v_lshl_add_u32", t2, t1, 5, t2)
    pre("s_lshl_b32", "s95", sW, 3)
    pre("v_add_u32", t3, "s95", G_)
    pre("v_mul_u32_u24", t3, 3584, t3)
    pre("v_add_u32", t3, t3, t2)
    pre("v_cmp_eq_u32", "vcc", 7, t1)
    pre("v_mov_b32", "v217", 0x40000000)
    pre("s_nop", 0)
    pre("v_cndmask_b32", voffG, t3, "v217", "vcc")

    units = []
    units += [("G", k) for k in range(14)] + [("Q", n) for n in range(14)] + [("D", j) for j in range(6)]
    units += [("K", 0), ("D", 6)]
    for t in range(63): units += [("K", t + 1), ("V", t)]
    units += [("V", 63)] + [("O", n) for n in range(14)]
    NU = len(units)
    slot = lambda u: u % 8
    voffKV = [V(32 + 24 + i, 1, f"voffKV{i}") for i in range(4)]
    tmpc = [0]

    def dma_ops(u):
        kind, n = units[u]
        sb = slot(u) * 16384
        meta = dict(unit=u, slot=slot(u))
        out = []
        def so(val):
            s = sTMP[tmpc[0] % 4]; tmpc[0] += 1
            return s, I("s_mov_b32", s, val)
        def ld(voff, srd_, soff, off):
            return I("buffer_load_dwordx4", voff, srd_, soff, mods=f"offen offset:{off} lds", tag=("u", u), meta=meta)
        if kind == "G":
            s0, i0 = so(n * 32 * 3584); s1, i1 = so(n * 32 * 3584 + 4 * 3584 - 1024)
            out.append(([I("s_add_u32", "m0", sM2K, sb), i0], ld(voffG, sG, s0, 0)))
            out.append(([i1], ld(voffG, sG, s1, 1024)))
            out.append(([I("s_add_u32", "m0", sM2K, sb + 8192)], ld(voffG, sU, s0, 0)))
            out.append(([], ld(voffG, sU, s1, 1024)))
        elif kind == "Q":
            half, nn = n // 7, n % 7
            for i in range(4):
                s, ii = so(half * 256 + (64 * nn + 16 * (i >> 1) + 4 * (i & 1)) * 8192 - 1024 * (i & 1))
                m = [I("s_add_u32", "m0", sMQ, sb + 4096 * (i >> 1))] if i % 2 == 0 else []
                out.append((m + [ii], ld(voffQ, sWq, s, 1024 * (i & 1))))
        elif kind in "DO":
            base = n * 128 if kind == "D" else (n // 2) * 128 + (n % 2) * 128 * 896
            for i in range(4):
                s, ii = so(base + i * (8 * 896 - 1024))
                m = [I("s_add_u32", "m0", sM4K, sb)] if i == 0 else []
                out.append((m + [ii], ld(voffDO, sWd if kind == "D" else sWo, s, 1024 * i)))
        else:
            s = sOK if kind == "K" else sOV
            for i in range(4):
                m = [I("s_add_u32", "m0", sM4K, sb), I("s_add_u32", s, s, 16384)] if i == 0 else []
                out.append((m, ld(voffKV[i], sK if kind == "K" else sV, s, 1024 * i)))
        return out

    for u in range(8):
        for sal, d in dma_ops(u):
            for x in sal: P.put(-1, x)
            if sal and sal[-1].args[0] == "m0": pre("s_nop", 0)
            P.put(-1, d)
    srd(sWq, 10, sHEAD, 512, 448 * 8192, sub=True)
    srd(sWd, 20, sHEAD, 112 * 896, 112 * 896)
    srd(sK, 6, sHEAD, 1 << 20, 1 << 20)
    srd(sV, 8, sHEAD, 1 << 20, 1 << 20)
    srd(sWo, 12, sHEAD, 256 * 896, 256 * 896)
    pre("s_lshl_b32", "s97", sHEAD, 4)
    pre("s_add_u32", "s97", "s97", sQB)
    srd(sP, 26, "s97", PART, DOFF + PART)
    if OPT["stamps"]:
        pre("s_mov_b32", "s98", "s26"); pre("s_mov_b32", "s99", "s27")
    pre("s_mov_b32", sOK, -16384 & 0xffffffff)
    pre("s_mov_b32", sOV, -16384 & 0xffffffff)
    pre("s_mov_b32", sTHR, f2u(2.0 ** 30))
    pre("v_add_u32", t3, "s94", G_)
    pre("v_lshl_add_u32", voffQ, t3, 13, t2)
    pre("v_bfe_u32", t1, L, 1, 2)
    pre("v_xor_b32", t1, t1, G_)
    pre("v_and_b32", t2, 1, L)
    pre("v_lshlrev_b32", t2, 4, t2)
    pre("v_lshl_add_u32", t2, t1, 5, t2)
    pre("v_lshrrev_b32", t3, 3, L)
    pre("s_lshl_b32", "s95", sW, 5)
    pre("v_add_u32", t3, "s95", t3)
    pre("v_mul_u32_u24", t3, 896, t3)
    pre("v_add_u32", voffDO, t3, t2)
    pre("s_mul_i32", "s95", sW, 28672)
    pre("v_lshl_add_u32", voffSt, L, 4, "s95")
    pre("v_and_b32", t1, 7, L)
    pre("v_lshlrev_b32", t1, 1, t1)
    pre("v_lshrrev_b32", t2, 3, Q15)
    pre("v_or_b32", t1, t1, t2)
    pre("v_and_b32", t2, 1, G_)
    pre("v_lshl_or_b32", t2, t2, 1, LH)
    pre("v_xor_b32", t1, t1, t2)
    pre("v_lshlrev_b32", t1, 4, t1)
    pre("v_lshl_add_u32", kbase, Q15, 9, t1)
    pre("v_lshl_add_u32", t1, G_, 2, RR)
    pre("v_and_b32", t2, 7, t1)
    pre("v_lshlrev_b32", t2, 5, t2)
    pre("v_lshl_add_u32", t1, t1, 9, t2)
    pre("v_lshlrev_b32", t2, 3, CC)
    pre("v_lshlrev_b32", t3, 4, LH)
    pre("v_xor_b32", t2, t2, t3)
    pre("v_add_u32", vbase, t1, t2)
    pre("v_lshl_or_b32", t1, LH, 1, "s93")
    pre("v_xor_b32", t1, t1, LC)
    pre("v_lshlrev_b32", t1, 4, t1)
    pre("v_lshl_add_u32", t1, LH, 9, t1)
    pre("v_add_u32", voffKV0, sM4K, t1)
    pre("v_lshl_add_u32", t1, G_, 2, RR)
    pre("v_bfe_u32", t2, t1, 1, 2)
    pre("v_lshlrev_b32", t2, 5, t2)
    pre("v_lshl_add_u32", t1, t1, 7, t2)
    pre("v_lshl_add_u32", dobase, CC, 3, t1)
    pre("v_and_b32", t1, 1, G_)
    pre("v_lshl_or_b32", t1, t1, 2, RR)
    pre("v_lshlrev_b32", t1, 5, t1)
    pre("v_lshl_add_u32", t1, CC, 3, t1)
    pre("v_lshl_add_u32", t2, G_, 3, RR)
    pre("v_lshl_add_u32", gq[0], t2, 8, t1)
    for j in range(1, 8): pre("v_xor_b32", gq[j], 32 * j, gq[0])
    for r in range(3): pre("v_cmp_eq_u32", sMASK[r], r + 1, CC)
    pre("v_cmp_eq_u32", sMASK[3], RR, G_)
    ones = V(220, 4, "ones")
    for i in range(4): pre("v_mov_b32", ones[i], 0x3f803f80)

    ring = [0]
    abase = {}
    dsq = []

    def new_frag():
        f = A_(4 * (ring[0] % 16), 4, f"frag{ring[0]}"); ring[0] += 1
        return f

    def rebase(addr, off, g):
        cur = abase.get(addr[0].base, 0)
        want = off & 0x10000
        if want != cur:
            nv = addr[0].new()
            P.put(g - 1, I("v_xor_b32", nv, 0x10000, addr[0]))
            addr[0] = nv; abase[nv.base] = want
        return off & 0xffff

    def rd_tr(g, dst, addr, off, u, dual=False):
        if dual: a, imm = addr[off >> 16], off & 0xffff
        else: imm = rebase(addr, off, g); a = addr[0]
        P.put(g, I("ds_read_b64_tr_b16", dst, a, mods=f"offset:{imm}", meta=dict(unit=u, slot=slot(u))))

    def mf(D, A, B, C=None, k16=False):
        return P.mfma(I("v_mfma_f32_16x16x16_bf16" if k16 else "v_mfma_f32_16x16x32_bf16", D, A, B, D if C is None else C))

    ustart = {}

    def sync(u, g, dma_gaps=None):
        tags = [("u", x) for x in (u + 1, u + 2)]
        P.put(g - 1, I("s_waitcnt", "vmcnt(?)", meta=dict(vm=tags, keep=True)))
        P.put(g, I("s_barrier"))
        if u == 0: return
        grp = []
        for x in (u + 6, u + 7):
            if x < NU: grp += dma_ops(x)
        gs = dma_gaps or [g + 3 + 6 * i for i in range(8)]
        for (sal, d), gg in zip(grp, gs):
            for i, x in enumerate(sal): P.put(gg - len(sal) + i, x)
            P.put(gg, d)

    sumacc = [V(224 + 4 * qs, 4, f"sum{qs}") for qs in range(2)]
    pu = V(232, 16, "preunp")
    for k in range(14):
        for qs in range(2):
            g = P.g
            if qs == 0: P.put(g - 1, I("s_waitcnt", "vmcnt(?)", meta=dict(vm=[("x", k, 1)])))
            mf(sumacc[qs], ones, xraw[k, qs], 0 if k == 0 else None)
    ops = []
    for qs in range(2):
        for i in range(4):
            ops += [I("v_lshlrev_b32", pu[8 * qs + 2 * i], 16, xraw[0, qs][i]), I("v_and_b32", pu[8 * qs + 2 * i + 1], 0xffff0000, xraw[0, qs][i])]
    P.spread(ops, 2, 18)
    g = P.g - 1
    P.raw.add(g)
    mean = [V(T0 + qs, 1, "mean") for qs in range(2)]
    mr = [st[0], st[1]]; dl = [st[2], st[3]]
    pk = V(T0 + 2, 1, "pk")
    P.put(g, I("s_waitcnt", "vmcnt(?)", meta=dict(vm=[("u", 0)], keep=True)))
    P.put(g, I("s_barrier"))
    g_first_reads = g
    late = []
    for qs in range(2): late.append(I("v_mul_f32", mean[qs], f2u(1.0 / 448), sumacc[qs][0]))
    late.append(I("v_cvt_pk_bf16_f32", pk, mean[0], mean[1]))
    late.append(I("v_lshlrev_b32", mr[0], 16, pk))
    late.append(I("v_and_b32", mr[1], 0xffff0000, pk))
    for qs in range(2): late.append(I("v_sub_f32", dl[qs], mean[qs], mr[qs]))
    xc = {}
    for qs in range(2):
        xc[0, qs] = xraw[0, qs].new(f"xc0_{qs}")
        for i in range(8): late.append(I("v_sub_f32", pu[8 * qs + i], pu[8 * qs + i], mr[qs]))
        for i in range(4): late.append(I("v_cvt_pk_bf16_f32", xc[0, qs][i], pu[8 * qs + 2 * i], pu[8 * qs + 2 * i + 1]))

    def center(k):
        o = []
        for qs in range(2):
            xc[k, qs] = xraw[k, qs].new(f"xc{k}_{qs}")
            t = V(T0, 8, "ctmp")
            for i in range(4):
                o += [I("v_lshlrev_b32", t[2 * i], 16, xraw[k, qs][i]), I("v_and_b32", t[2 * i + 1], 0xffff0000, xraw[k, qs][i])]
            for i in range(8): o.append(I("v_sub_f32", t[i], t[i], mr[qs]))
            for i in range(4): o.append(I("v_cvt_pk_bf16_f32", xc[k, qs][i], t[2 * i], t[2 * i + 1]))
        return o

    gqa = [[x] for x in gq]
    clampg = lambda g: max(g, g_first_reads)

    stamp(P.g - 1)
    gacc = {(j, img, qs): V(GB + 16 * j + 8 * qs + 4 * img, 4, f"gacc{j}{img}{qs}") for j in range(7) for img in range(2) for qs in range(2)}
    gram = [A_(192 + 4 * qs, 4, f"gram{qs}") for qs in range(2)]
    for k in range(14):
        u = k
        g0 = ustart[u] = P.g
        nxt = center(k + 1) if k < 13 else []
        for qs in range(2): mf(gram[qs], xc[k, qs], xc[k, qs], 0 if k == 0 else None)
        for j in range(7):
            for img in range(2):
                f = new_frag()
                for e in range(2):
                    rd_tr(clampg(P.g - LEAD + e), f[2 * e:2 * e + 2], gqa[j], slot(u) * 16384 + img * 8192 + 4 * e * 256, u)
                for qs in range(2): mf(gacc[j, img, qs], f, xc[k, qs], 0 if k == 0 else None)
        if k == 0:
            for x in late: P.put(g_first_reads, x)
        if nxt: P.spread(nxt, g0, P.g - 2)
        if u % 2 == 0: sync(u, g0 + 3)
    o = []
    cq, cg, sd = [st[0].new("cq0"), st[1].new("cq1")], [st[2].new("cg0"), st[3].new("cg1")], [st[4], st[5]]
    for qs in range(2):
        t = V(T0, 8, "gtmp")
        for r in range(4): o.append(I("v_accvgpr_read_b32", t[r], gram[qs][r]))
        for r in range(3): o.append(I("v_cndmask_b32", t[0], t[0], t[r + 1], sMASK[r]))
        o.append(I("v_cndmask_b32", t[0], 0, t[0], sMASK[3]))
        for sw in ("v_permlane32_swap_b32", "v_permlane16_swap_b32"):
            o += [I("v_mov_b32", t[1], t[0]), I(sw, t[0], t[1]), I("v_add_f32", t[0], t[0], t[1])]
        o.append(I("v_mul_f32", t[1], dl[qs], dl[qs]))
        o.append(I("v_mul_f32", t[0], f2u(1.0 / 448), t[0]))
        o.append(I("v_sub_f32", t[0], t[0], t[1]))
        o.append(I("v_max_f32", t[0], 0, t[0]))
        rnd = lambda: [I("v_cvt_pk_bf16_f32", t[0], t[0], t[0]), I("v_lshlrev_b32", t[0], 16, t[0])]
        o += rnd()
        o.append(I("v_add_f32", t[0], f2u(1e-5), t[0]))
        o += rnd()
        o.append(I("v_sqrt_f32", t[0], t[0]))
        o += [I("v_cvt_pk_bf16_f32", t[0], t[0], t[0]), I("v_lshlrev_b32", sd[qs], 16, t[0])]
        o.append(I("v_rcp_f32", t[0], sd[qs]))
        o.append(I("v_mul_f32", cq[qs], f2u(LOG2E / 16), t[0]))
        o.append(I("v_mul_f32", cg[qs], f2u(-LOG2E), t[0]))
    stat_ops = o

    stamp(P.g - 1)
    qacc = {(dt, qs): A_(128 + 8 * dt + 4 * qs, 4, f"qacc{dt}_{qs}") for dt in range(16) for qs in range(2)}
    for n in range(14):
        u = 14 + n
        half, nn = n // 7, n % 7
        g0 = ustart[u] = P.g
        for ks in range(2):
            k = 2 * nn + ks
            for j in range(8):
                f = new_frag()
                for e in range(2):
                    rd_tr(P.g - LEAD + e, f[2 * e:2 * e + 2], gqa[j], slot(u) * 16384 + (32 * ks + 4 * e) * 256, u)
                for qs in range(2): mf(qacc[8 * half + j, qs], f, xc[k, qs], 0 if k == 0 else None)
        if u % 2 == 0: sync(u, g0 + 3)
    P.spread(stat_ops, ustart[13] + 5, ustart[14] + 24)
    hh = {}
    o = []
    for j in range(7):
        for qs in range(2):
            ga, ua = gacc[j, 0, qs], gacc[j, 1, qs]
            for r in range(4): o.append(I("v_mul_f32", ga[r], cg[qs], ga[r]))
            for r in range(4): o.append(I("v_exp_f32", ga[r], ga[r]))
            for r in range(4): o.append(I("v_fma_f32", ga[r], ga[r], sd[qs], sd[qs]))
            for r in range(4): o.append(I("v_rcp_f32", ga[r], ga[r]))
            for r in range(4): o.append(I("v_mul_f32", ua[r], ga[r], ua[r]))
            if j % 2 == 0: hh[j // 2, qs] = ga.new(f"hh{j//2}_{qs}")
            h = hh[j // 2, qs]
            for i in range(2): o.append(I("v_cvt_pk_bf16_f32", h[2 * (j % 2) + i], ua[2 * i], ua[2 * i + 1]))
    gepi = o
    qf = {(ks, qs): A_(64 + 8 * ks + 4 * qs, 4, f"qf{ks}_{qs}") for ks in range(8) for qs in range(2)}

    def qepi(ks, qs):
        t = V(T0, 8, "qtmp")
        o = []
        for i in range(8): o.append(I("v_accvgpr_read_b32", t[i], qacc[2 * ks + i // 4, qs][i % 4]))
        for i in range(8): o.append(I("v_mul_f32", t[i], cq[qs], t[i]))
        for i in range(4): o.append(I("v_cvt_pk_bf16_f32", t[i], t[2 * i], t[2 * i + 1]))
        o += [I("v_permlane16_swap_b32", t[0], t[2]), I("v_permlane16_swap_b32", t[1], t[3])]
        for i in range(4): o.append(I("v_accvgpr_write_b32", qf[ks, qs][i], t[i]))
        return o
    qa = [x for ks in range(4) for qs in range(2) for x in qepi(ks, qs)]
    qb = [x for ks in range(4, 8) for qs in range(2) for x in qepi(ks, qs)]
    gend = P.g
    split = ustart[14] + 24 + (gend - ustart[14] - 24) * len(gepi) // (len(gepi) + len(qa) + 8)
    assert split >= ustart[21] + 4
    P.spread(gepi, ustart[14] + 24, split)
    doa = [[V(20 + 2, 1, "do0")], [V(23, 1, "do1")], [V(60, 1, "do2")], [V(61, 1, "do3")]]
    adr = [I("v_xor_b32", doa[s][0], 32 * s, dobase) for s in range(4)]
    adr += [I("v_xor_b32", voffKV[i], 64 * i, voffKV0) for i in range(4)]
    P.spread(qa[:104] + adr + qa[104:], split, gend - 1)

    def do_unit(u, B, nks, acc, first, last_half=False):
        done = {}
        for T in range(4):
            for ks in range(nks):
                f = new_frag()
                k16 = last_half and ks == nks - 1
                for e in range(1 if k16 else 2):
                    rd_tr(P.g - LEAD + e, f[2 * e:2 * e + 2], doa[T], slot(u) * 16384 + (32 * ks + 16 * e) * 128, u)
                for qs in range(2):
                    c = 0 if (first and ks == 0) else None
                    if k16: mf(acc[T, qs], f[0:2], B[ks, qs][0:2], c, k16=True)
                    else: mf(acc[T, qs], f, B[ks, qs], c)
            done[T] = P.g - 1
        return done

    def do_epi(acc, p, soff, scale=None):
        o = []
        for qs in range(2):
            a, b = acc[2 * p, qs], acc[2 * p + 1, qs]
            if scale:
                for x in (a, b):
                    for r in range(4): o.append(I("v_mul_f32", x[r], scale[qs], x[r]))
            pkd = a.new("pkd")
            o += [I("v_cvt_pk_bf16_f32", pkd[0], a[0], a[1]), I("v_cvt_pk_bf16_f32", pkd[1], a[2], a[3]),
                  I("v_cvt_pk_bf16_f32", pkd[2], b[0], b[1]), I("v_cvt_pk_bf16_f32", pkd[3], b[2], b[3])]
            if qs == 0: o.append(I("s_mov_b32", sST, soff))
            o.append(None)
            o.append(I("buffer_store_dwordx4", pkd, voffSt, sP, sST, mods=f"offen offset:{(2*qs+p)*1024}", tag="st"))
        return o

    def seq(ops, g0, per=1):
        g = g0; c = 0
        for x in ops:
            if x is None:
                g += 1; c = 0; continue
            P.put(g, x)
            if x.kind != "salu":
                c += 1
                if c >= per: g += 1; c = 0
        return g

    dblk = [128, GB + 16, GB + 48, GB + 80]
    def dacc(j): return {(T, qs): V(dblk[2 * (j % 2) + T // 2] + 8 * (T % 2) + 4 * qs, 4, f"dacc{j}_{T}{qs}") for T in range(4) for qs in range(2)}

    stamp(P.g - 1)
    def d_unit(u, j):
        g0 = ustart[u] = P.g
        acc = dacc(j)
        done = do_unit(u, hh, 4, acc, True, last_half=True)
        for p in range(2): seq(do_epi(acc, p, DOFF + j * 4096), done[2 * p + 1] + 4)
        if u % 2 == 0: sync(u, g0 + 3)
    for j in range(6): d_unit(28 + j, j)
    ka = [[V(32 + 4 * h + i, 1, f"ka{h}{i}") for h in range(2)] for i in range(4)]
    va = [[V(40 + 8 * h + j, 1, f"va{h}{j}") for h in range(2)] for j in range(8)]
    adr = [I("v_xor_b32", ka[i][h], 64 * i + 0x10000 * h, kbase) for i in range(4) for h in range(2)]
    adr += [I("v_xor_b32", va[j][h], 32 * j + 0x10000 * h, vbase) for j in range(8) for h in range(2)]
    P.spread(qb + adr, ustart[28] + 4, P.g - LEAD - 1)

    O = {(dt, qs): V(128 + 8 * dt + 4 * qs, 4, f"O{dt}_{qs}") for dt in range(16) for qs in range(2)}
    Sreg = lambda t, sub, qs: 64 + 16 * (t % 2) + 8 * sub + 4 * qs
    Preg = lambda t, qs: 96 + 8 * (t % 2) + 4 * qs
    negm = [V(112 + 4 * qs, 4, f"negm{qs}") for qs in range(2)]
    lsum = [V(120 + qs, 1, f"l{qs}") for qs in range(2)]
    S, Pv, ps = {}, {}, {}
    slotgap = lambda n: 4 * (n // 3) + (n % 3)

    def k_unit(u, t, rdgap):
        ustart[u] = P.g
        for sub in range(2):
            for qs in range(2): S[t, sub, qs] = V(Sreg(t, sub, qs), 4, f"S{t}_{sub}{qs}")
            for ks in range(8):
                f = new_frag()
                off = slot(u) * 16384 + 8192 * sub + 256 * (ks >> 2)
                P.put(rdgap(8 * sub + ks), I("ds_read_b128", f, ka[ks & 3][off >> 16], mods=f"offset:{off & 0xffff}", meta=dict(unit=u, slot=slot(u))))
                for qs in range(2):
                    c = None if ks else (0 if t == 0 else negm[qs])
                    mf(S[t, sub, qs], f, qf[ks, qs], c)

    def v_unit(u, t, rdgap):
        ustart[u] = P.g
        done = {}
        for dt in range(16):
            f = new_frag()
            for e in range(2):
                rd_tr(rdgap(2 * dt + e), f[2 * e:2 * e + 2], va[dt & 7], slot(u) * 16384 + 8192 * e + 256 * (dt >> 3), u, dual=True)
            for qs in range(2): mf(O[dt, qs], f, Pv[t, qs], 0 if t == 0 else None)
            done[dt] = P.g - 1
        return done

    def softmax_ops(t):
        for qs in range(2):
            Pv[t, qs] = V(Preg(t, qs), 4, f"P{t}_{qs}")
            ps[t, qs] = V(122 + qs, 1, f"ps{t}_{qs}")
        out = []
        n = 0
        for sub in range(2):
            for qs in range(2):
                prev = None
                for r in range(4):
                    e = V(T0 + n % 4, 1, f"e{t}_{n}"); n += 1
                    ex = I("v_exp_f32", e, S[t, sub, qs][r])
                    if sub == 0 and r == 0: ad = None
                    elif sub == 0 and r == 1: ad = I("v_add_f32", ps[t, qs], prev, e)
                    else: ad = I("v_add_f32", ps[t, qs], ps[t, qs], e)
                    cv = I("v_cvt_pk_bf16_f32", Pv[t, qs][2 * sub + r // 2], prev, e) if r % 2 else None
                    out.append((ex, ad, cv)); prev = e
        return out

    def check_ops(t, g, site):
        mx = V(T0 + 4, 1, "mx")
        P.put(g, I("v_max_f32", mx, ps[t, 0], ps[t, 1]))
        P.put(g + 1, I("v_cmp_nge_f32", "vcc", sTHR, mx))
        P.put(g + 3, I("s_cbranch_vccnz", f"L_slow_{site}"))
        P.put(g + 3, I(f"L_back_{site}:"))
        if (site, t % 2) not in slow_sites: slow_sites.append((site, t % 2))
        for qs in range(2): P.put(g + 3 + qs, I("v_add_f32", lsum[qs], lsum[qs], ps[t, qs]))

    stamp(P.g - 1)
    g0 = P.g
    k_unit(34, 0, lambda n: g0 + 2 * n - LEAD)
    sync(34, g0 + 3)
    gk0 = P.g
    d_unit(35, 6)
    o = []
    for qs in range(2):
        t = V(T0 + 4 + 2 * qs, 2, "mtmp")
        a, b = S[0, 0, qs], S[0, 1, qs]
        o += [I("v_max3_f32", t[0], a[0], a[1], a[2]), I("v_max3_f32", t[0], t[0], a[3], b[0]), I("v_max3_f32", t[0], t[0], b[1], b[2]), I("v_max_f32", t[0], t[0], b[3])]
        for sw in ("v_permlane32_swap_b32", "v_permlane16_swap_b32"):
            o += [I("v_mov_b32", t[1], t[0]), I(sw, t[0], t[1]), I("v_max_f32", t[0], t[0], t[1])]
        for r in range(4): o.append(I("v_sub_f32", negm[qs][r], 0, t[0]))
        o.append(I("v_mov_b32", lsum[qs], 0))
    for sub in range(2):
        for qs in range(2):
            for r in range(4): o.append(I("v_add_f32", S[0, sub, qs][r], S[0, sub, qs][r], negm[qs][0]))
    P.spread(o[:30], gk0 + 3, P.g - 2)
    P.spread(o[30:], P.g - 6, P.g + 4)
    sm = {0: softmax_ops(0)}
    gi0 = P.g
    for i, (ex, ad, cv) in enumerate(sm[0]):
        g = gi0 + 1 + (i * 23) // 16
        P.put(g, ex)
        if ad: P.put(g + 1, ad)
        if cv: P.put(g + 1, cv)
    loop_first, loop_n = 2, 14
    loop_g = []
    ROT = 8
    for t in range(63):
        uk, uv = 36 + 2 * t, 37 + 2 * t
        g0 = P.g
        inloop = loop_first <= t < loop_first + 4 * loop_n
        if inloop and (t - loop_first) % 4 == 0:
            loop_g.append(g0)
            P.put(g0 - 1, I("L_loop:", meta=dict(last=True)))
        sg = lambda n: g0 + slotgap(n - ROT + 48) - 64
        k_unit(uk, t + 1, lambda n: sg(n))
        site = f"w{(t - loop_first) % 4}" if inloop else f"p{t}"
        check_ops(t, g0 + 25, site)
        v_unit(uv, t, lambda n: sg(16 + n))
        sync(uk, g0 + 5, dma_gaps=[g0 + x for x in (9, 14, 18, 22, 34, 42, 50, 58)])
        sm[t + 1] = softmax_ops(t + 1)
        for i, (ex, ad, cv) in enumerate(sm[t + 1]):
            if t + 1 < 63:
                g = g0 + 27 + 4 * i + (4 if i == 0 else 0) * 0
                if i == 0: g = g0 + 30
            else:
                g = g0 + 30 + 2 * i
            P.put(g, ex)
            if ad: P.put(g + 1, ad)
            if cv: P.put(g + (2 if t + 1 < 63 else 1), cv)
        if inloop and (t - loop_first) % 4 == 3:
            P.put(P.g - 2, I("s_sub_u32", sCNT, sCNT, 1))
            P.put(P.g - 1, I("s_cbranch_scc0", "L_loop", meta=dict(last=True)))
        if t == loop_first - 1:
            P.put(g0 + 40, I("s_mov_b32", sCNT, loop_n - 1))
    g0 = P.g
    gl = g0 - 1
    P.raw.add(gl)
    mx = V(T0 + 4, 1, "mx")
    tail = [I("v_max_f32", mx, ps[63, 0], ps[63, 1]), I("v_cmp_nge_f32", "vcc", sTHR, mx), I("s_cbranch_vccnz", "L_slow_last"), I("L_back_last:")]
    slow_sites.append(("last", 1))
    done = v_unit(162, 63, lambda n: g0 + n - LEAD)
    for x in tail: P.put(gl, x)
    sync(162, g0 + 3)
    stamp(P.g - 1)
    o = []
    rl = [st[0].new("rl0"), st[1].new("rl1")]
    lo = []
    for qs in range(2):
        t = V(T0 + 2 * qs, 2, "ltmp")
        lo.append(I("v_add_f32", t[0], lsum[qs], ps[63, qs]))
        for sw in ("v_permlane32_swap_b32", "v_permlane16_swap_b32"):
            lo += [I("v_mov_b32", t[1], t[0]), I(sw, t[0], t[1]), I("v_add_f32", t[0], t[0], t[1])]
        lo.append(I("v_rcp_f32", rl[qs], t[0]))
    of = {}
    for ks in range(8):
        o = []
        for qs in range(2):
            a, b = O[2 * ks, qs], O[2 * ks + 1, qs]
            of[ks, qs] = a.new(f"of{ks}_{qs}")
            x = of[ks, qs]
            o += [I("v_cvt_pk_bf16_f32", x[0], a[0], a[1]), I("v_cvt_pk_bf16_f32", x[1], a[2], a[3]),
                  I("v_cvt_pk_bf16_f32", x[2], b[0], b[1]), I("v_cvt_pk_bf16_f32", x[3], b[2], b[3])]
        gs = max(done[2 * ks + 1] + 4, g0 + 6 + 6 * ks)
        P.spread(o, gs, gs + 6)
    P.spread(lo, g0, g0 + 7)
    for j in range(7):
        acc = {(T, qs): V(64 + 32 * (j % 2) + 8 * T + 4 * qs, 4, f"oacc{j}_{T}{qs}") for T in range(4) for qs in range(2)}
        for half in range(2):
            u = 163 + 2 * j + half
            g0 = ustart[u] = P.g
            done = do_unit(u, {(ks, qs): of[4 * half + ks, qs] for ks in range(4) for qs in range(2)}, 4, acc, half == 0)
            if u % 2 == 0: sync(u, g0 + 3)
        gn = seq(do_epi(acc, 0, j * 4096, rl), done[1] + 4)
        seq(do_epi(acc, 1, j * 4096, rl), max(gn, done[3] + 4))
    gend = max(P.fill) + 1
    stamp(gend)

    lin = P.linear()
    out = []; held = []
    for ins in lin:
        if ins.kind == "mfma":
            held.sort(key=lambda x: x.kind == "label")
            out += held; held = []
        if ins.meta.get("last"): held.append(ins)
        else: out.append(ins)
    lin = out + held
    lin = insert_lgkm(lin)
    lin = resolve_vm(lin)
    check_values(lin)
    lin, probs = check_hazards(lin, fix=True)
    check_lds(lin)
    cost = gap_cost(lin)
    marks = [("sum", 0), ("G", ustart[0]), ("Q", ustart[14]), ("D", ustart[28]), ("K0", ustart[34]), ("it2", ustart[40]), ("it3", ustart[42]), ("V63", ustart[162]), ("O", ustart[163]), ("end", len(P.m))]
    for (n, a), (_, b) in zip(marks, marks[1:]):
        print(f"  model {n}: gaps {b-a} cycles {sum(cost.get(g, 0) for g in range(a, b))}", file=sys.stderr)
    print(f"  nops inserted: {len(probs)}", file=sys.stderr)
    for p in probs[:400]:
        if OPT.get("shownops"): print("   ", p, file=sys.stderr)

    idx = [i for i, x in enumerate(lin) if x.text == "L_loop:"]
    ends = [i for i, x in enumerate(lin) if x.text == "s_cbranch_scc0 L_loop"]
    assert len(idx) == len(ends) == loop_n
    body = [x.text for x in lin[idx[0]:ends[0] + 1]]
    for a, b in zip(idx[1:], ends[1:]):
        other = [x.text for x in lin[a:b + 1]]
        if other != body:
            for q, (x, y) in enumerate(zip(body, other)):
                if x != y: raise RuntimeError(f"loop not periodic at {q}: {x} | {y}")
            raise RuntimeError("loop length differs")
    for a, b in zip(ends, idx[1:]): assert b == a + 1
    q = ends[0] - 1
    while not lin[q].text.startswith(f"s_sub_u32 {sCNT}"):
        assert ("scc", 0) not in lin[q].wr, lin[q].text
        q -= 1
    txt = [x.text for x in lin[:idx[0]]] + [".p2align 3"] * 0 + body + [x.text for x in lin[ends[-1] + 1:]]
    if OPT["stamps"]:
        n = stamp_n[0]
        txt += ["s_waitcnt vmcnt(0)", f"s_memtime s[{4+2*n}:{5+2*n}]", "s_memrealtime s[22:23]", "s_waitcnt lgkmcnt(0)"]
        txt += ["s_add_u32 s28, s98, 0x8000000", "s_addc_u32 s29, s99, 0", "s_and_b32 s29, s29, 0xffff", "s_mov_b32 s30, 0x100000", "s_mov_b32 s31, 0x20000"]
        txt += ["s_lshl_b32 s3, s2, 2", f"s_add_u32 s3, s3, {sW}", "s_lshl_b32 s3, s3, 6", "v_mov_b32 v1, s3"]
        for i in range(n + 1):
            txt += [f"v_mov_b32 v2, s{4+2*i}", f"buffer_store_dword v2, v1, s[28:31], 0 offen offset:{4*i}"]
        txt += ["v_mov_b32 v2, s22", "buffer_store_dword v2, v1, s[28:31], 0 offen offset:60"]
        txt += ["v_mov_b32 v2, s100", "buffer_store_dword v2, v1, s[28:31], 0 offen offset:56", "v_mov_b32 v2, s101", "buffer_store_dword v2, v1, s[28:31], 0 offen offset:52"]
        txt = ["s_memtime s[98:99]", "s_memrealtime s[96:97]", "s_waitcnt lgkmcnt(0)", "s_mov_b32 s100, s98", "s_mov_b32 s101, s96"] + txt
    txt += ["L_end:", "s_endpgm"]
    for site, par in slow_sites:
        txt += [f"L_slow_{site}:", f"s_call_b64 {sRET}, L_rescale{par}", f"s_branch L_back_{site}"]
    for par in range(2):
        r = [f"L_rescale{par}:", "s_nop 15"]
        t0, t1_, dlt, fac = f"v{T0}", f"v{T0+1}", f"v{T0+2}", f"v{T0+3}"
        for qs in range(2):
            a, b = Sreg(par, 0, qs), Sreg(par, 1, qs)
            cur = [a + i for i in range(4)] + [b + i for i in range(4)]
            nx = [Sreg(1 - par, s, qs) + i for s in range(2) for i in range(4)]
            r += [f"v_max3_f32 {dlt}, v{cur[0]}, v{cur[1]}, v{cur[2]}", f"v_max3_f32 {dlt}, {dlt}, v{cur[3]}, v{cur[4]}",
                  f"v_max3_f32 {dlt}, {dlt}, v{cur[5]}, v{cur[6]}", f"v_max3_f32 {dlt}, {dlt}, v{cur[7]}, 0"]
            for sw in ("v_permlane32_swap_b32", "v_permlane16_swap_b32"):
                r += [f"v_mov_b32 {t0}, {dlt}", "s_nop 1", f"{sw} {dlt}, {t0}", "s_nop 1", f"v_max_f32 {dlt}, {dlt}, {t0}"]
            r += [f"v_exp_f32_e64 {fac}, -{dlt}", "s_nop 0"]
            for x in cur + nx + [negm[qs].base + i for i in range(4)]: r.append(f"v_sub_f32 v{x}, v{x}, {dlt}")
            r.append(f"v_mul_f32 v{lsum[qs].base}, v{lsum[qs].base}, {fac}")
            for dt in range(16):
                for i in range(4): r.append(f"v_mul_f32 v{O[dt, qs].base + i}, v{O[dt, qs].base + i}, {fac}")
            for i in range(4):
                r += [f"v_exp_f32 {t0}, v{cur[2*i]}", f"v_exp_f32 {t1_}, v{cur[2*i+1]}", "s_nop 0"]
                r.append(f"v_cvt_pk_bf16_f32 v{Preg(par, qs) + i}, {t0}, {t1_}")
                r.append(f"v_add_f32 {t0}, {t0}, {t1_}")
                r.append(f"v_add_f32 v{122+qs}, v{122+qs}, {t0}" if i else f"v_mov_b32 v{122+qs}, {t0}")
        r += ["s_nop 3", f"s_setpc_b64 {sRET}"]
        txt += r
    txt += ["L_k1_last:", "s_endpgm"]
    return txt


def k2():
    t = []
    A = t.append
    A("s_load_dwordx2 s[4:5], s[0:1], 0")
    A("s_load_dwordx2 s[6:7], s[0:1], 72")
    A("s_load_dwordx2 s[8:9], s[0:1], 88")
    A("s_cmp_ge_u32 s2, 256")
    A("s_cbranch_scc1 L2_end")
    A("v_lshrrev_b32 v1, 6, v0")
    A("v_and_b32 v2, 63, v0")
    A("v_readfirstlane_b32 s3, v1")
    A("s_mul_i32 s10, s2, 7")
    A("s_nop 2")
    A("s_add_u32 s3, s3, s10")
    A("s_lshl_b32 s10, s3, 10")
    A("v_lshl_add_u32 v3, v2, 4, s10")
    A("s_waitcnt lgkmcnt(0)")
    A("s_mov_b32 s12, s8"); A("s_and_b32 s13, s9, 0xffff"); A(f"s_mov_b32 s14, {2*DOFF}"); A("s_mov_b32 s15, 0x20000")
    for h in range(32):
        hh = (h % 2) * 16 + h // 2
        A(f"s_mov_b32 s{30+h}, {hh*PLANE}")
        A(f"buffer_load_dwordx4 v[{32+4*h}:{35+4*h}], v3, s[12:15], s{30+h} offen")
    A("s_mov_b32 s16, s4"); A("s_and_b32 s17, s5, 0xffff"); A(f"s_mov_b32 s18, {2048*896}"); A("s_mov_b32 s19, 0x20000")
    A("s_mov_b32 s20, s6"); A("s_and_b32 s21, s7, 0xffff"); A(f"s_mov_b32 s22, {2048*896}"); A("s_mov_b32 s23, 0x20000")
    A("s_lshr_b32 s24, s3, 2")
    A("s_mul_i32 s25, s24, 9363")
    A("s_lshr_b32 s25, s25, 16")
    A("s_mul_i32 s26, s25, 7")
    A("s_sub_u32 s26, s24, s26")
    A("s_bfe_u32 s27, s3, 0x10001")
    A("s_and_b32 s28, s3, 1")
    A("s_lshl_b32 s25, s25, 1")
    A("s_add_u32 s25, s25, s27")
    A(f"s_mul_i32 s25, s25, {16*896}")
    A("s_lshl_b32 s26, s26, 7")
    A("s_lshl_b32 s28, s28, 6")
    A("s_add_u32 s25, s25, s26")
    A("s_add_u32 s25, s25, s28")
    A("v_and_b32 v4, 15, v2")
    A("v_mul_u32_u24 v4, 896, v4")
    A("v_lshrrev_b32 v5, 4, v2")
    A("v_lshl_add_u32 v4, v5, 3, v4")
    A("v_add_u32 v4, s25, v4")
    A("buffer_load_dwordx2 v[24:25], v4, s[16:19], 0 offen")
    A("buffer_load_dwordx2 v[26:27], v4, s[16:19], 0 offen offset:32")
    for h in range(32):
        A(f"s_waitcnt vmcnt({33-h})")
        acc = 8 + 8 * (h % 2)
        for i in range(4):
            src = 32 + 4 * h + i
            if h < 2:
                A(f"v_lshlrev_b32 v{acc+2*i}, 16, v{src}")
                A(f"v_and_b32 v{acc+2*i+1}, 0xffff0000, v{src}")
            else:
                A(f"v_lshlrev_b32 v28, 16, v{src}")
                A(f"v_and_b32 v29, 0xffff0000, v{src}")
                A(f"v_pk_add_f32 v[{acc+2*i}:{acc+2*i+1}], v[{acc+2*i}:{acc+2*i+1}], v[28:29]")
    def rnd(b):
        for i in range(4):
            A(f"v_cvt_pk_bf16_f32 v28, v{b+2*i}, v{b+2*i+1}")
            A(f"v_lshlrev_b32 v{b+2*i}, 16, v28")
            A(f"v_and_b32 v{b+2*i+1}, 0xffff0000, v28")
    rnd(8); rnd(16)
    for i in range(8): A(f"v_mul_f32 v{32+i}, 0x{f2u(-LOG2E):x}, v{16+i}")
    for i in range(8): A(f"v_exp_f32 v{32+i}, v{32+i}")
    for i in range(8): A(f"v_add_f32 v{32+i}, 1.0, v{32+i}")
    for i in range(8): A(f"v_rcp_f32 v{32+i}, v{32+i}")
    for i in range(8): A(f"v_mul_f32 v{16+i}, v{16+i}, v{32+i}")
    rnd(16)
    for i in range(8): A(f"v_mul_f32 v{8+i}, v{8+i}, v{16+i}")
    rnd(8)
    A("s_waitcnt vmcnt(0)")
    for i in range(4):
        A(f"v_lshlrev_b32 v28, 16, v{24+i}")
        A(f"v_and_b32 v29, 0xffff0000, v{24+i}")
        A(f"v_add_f32 v{8+2*i}, v{8+2*i}, v28")
        A(f"v_add_f32 v{9+2*i}, v{9+2*i}, v29")
        A(f"v_cvt_pk_bf16_f32 v{24+i}, v{8+2*i}, v{9+2*i}")
    A("buffer_store_dwordx2 v[24:25], v4, s[20:23], 0 offen")
    A("buffer_store_dwordx2 v[26:27], v4, s[20:23], 0 offen offset:32")
    A("L2_end:")
    A("s_endpgm")
    return t


def desc(name, vg, acc, sg):
    return [f".amdhsa_kernel {name}", f"  .amdhsa_next_free_vgpr {vg}", f"  .amdhsa_next_free_sgpr {sg}", f"  .amdhsa_accum_offset {acc}",
            "  .amdhsa_group_segment_fixed_size 0", "  .amdhsa_kernarg_size 96", "  .amdhsa_user_sgpr_count 2",
            "  .amdhsa_user_sgpr_kernarg_segment_ptr 1", "  .amdhsa_system_sgpr_workgroup_id_x 1", ".end_amdhsa_kernel"]


def main():
    ref = open(f"cdna_kernels/{NAME}.s.ref").read().splitlines()
    head = [l for l in ref if l.startswith(";") and "@launch" not in l and "Override launch" not in l and "grid=ceil" not in l]
    out = head + [f"; @launch kernel={NAME}_kernel grid=(256,1,1) block=(256,1,1) lds=131072",
                  "; @launch kernel=finish_kernel grid=(256,1,1) block=(448,1,1) lds=0",
                  '.amdgcn_target "amdgcn-amd-amdhsa--gfx950"', ".text"]
    for n, body in ((f"{NAME}_kernel", k1()), ("finish_kernel", k2())):
        out += [f".globl {n}", ".p2align 8", f".type {n},@function", f"{n}:"]
        out += [("" if l.endswith(":") else "    ") + l for l in body]
    out += ['.section .rodata,"a"', ".p2align 6"] + desc(f"{NAME}_kernel", 512, 256, 102) + [".p2align 6"] + desc("finish_kernel", 160, 160, 64)
    open(sys.argv[1], "w").write("\n".join(out) + "\n")


main()
```

```python
import sys, struct
from asmlib import *

NAME = "recurrent_scan__mha_block_cached__glu_gated_glu__prompt"
OPT = dict(stamps=False)
for a in sys.argv[2:]:
    k, v = a.split("="); OPT[k] = int(v)

f2u = lambda x: struct.unpack("<I", struct.pack("<f", x))[0]
LOG2E = 1.4426950408889634
PART = 114688
PLANE = 16 * PART
DOFF = 16 * PLANE
LEAD = 11

sX, sG, sU, sWq, sWd, sK, sV, sWo, sP = [f"s[{b}:{b+3}]" for b in range(28, 64, 4)]
sHEAD, sQB, sW, sM4K, sM2K, sMQ, sOK, sOV = "s64 s65 s66 s67 s68 s69 s70 s71".split()
sTMP = ["s72", "s73", "s74", "s75"]
sCNT, sTHR, sRET = "s76", "s77", "s[78:79]"
sMASK = ["s[80:81]", "s[82:83]", "s[84:85]", "s[86:87]"]
sXQ = "s88"
sST = "s89"

V = lambda b, n=1, name="": Val("v", b, n, name)
A_ = lambda b, n=1, name="": Val("a", b, n, name)


def k1():
    P = Prog()
    pre = lambda *a, **k: P.put(-1, I(*a, **k))
    slow_sites = []
    stamp_n = [0]

    def stamp(g):
        if not OPT["stamps"]: return
        i = stamp_n[0]; stamp_n[0] += 1
        P.put(g, I("s_memtime", f"s[{4+2*i}:{5+2*i}]"))
    early = []
    def estamp(g):
        if OPT["stamps"] != 2: return
        i = len(early); early.append(i)
        P.put(g, I("s_memtime", "s[78:79]")); P.put(g, I("s_waitcnt", "lgkmcnt(0)")); P.put(g, I("v_mov_b32", f"v{248+i}", "s78"))

    tid = V(0, 1, "tid")
    gq = [V(8 + j, 1, f"gq{j}") for j in range(8)]
    voffG, voffQ, voffDO, voffSt, kbase, vbase, voffKV0, dobase = [V(i, 1, n) for i, n in zip(range(0, 8), "voffG voffQ voffDO voffSt kbase vbase voffKV0 dobase".split())]
    st = [V(16 + i, 1, f"st{i}") for i in range(6)]
    T0 = 24
    XCB, GB = 32, 144

    pre("s_load_dwordx16", "s[4:19]", "s[0:1]", 0)
    pre("s_load_dwordx8", "s[20:27]", "s[0:1]", 64)
    pre("s_cmp_ge_u32", "s2", 256)
    pre("s_cbranch_scc1", "L_end")
    pre("s_getpc_b64", "s[90:91]")
    pre("L_pc0:")
    pre("v_lshlrev_b32", "v200", 7, "v0")
    pre("v_add_u32", "v201", 0x8000, "v200")
    pre("v_min_u32", "v201", "L_k1_last-L_pc0", "v201")
    if not OPT.get("nocode"):
        pre("global_load_dword", "v202", "v200", "s[90:91]", tag="code")
        pre("global_load_dword", "v203", "v201", "s[90:91]", tag="code")
    L, Q15, G_, RR, CC, LH, LC, t1, t2, t3, KEY = [f"v{204+i}" for i in range(11)]
    pre("v_lshrrev_b32", t1, 6, "v0")
    pre("v_and_b32", L, 63, "v0")
    pre("v_readfirstlane_b32", sW, t1)
    pre("v_and_b32", Q15, 15, L)
    pre("v_lshrrev_b32", G_, 4, L)
    pre("v_lshrrev_b32", RR, 2, Q15)
    pre("v_and_b32", CC, 3, L)
    pre("v_lshrrev_b32", LH, 5, L)
    pre("v_and_b32", LC, 31, L)
    pre("s_and_b32", "s3", "s2", 7)
    pre("s_lshl_b32", "s3", "s3", 1)
    pre("s_bfe_u32", sHEAD, "s2", 0x10003)
    pre("s_add_u32", sHEAD, sHEAD, "s3")
    pre("s_lshr_b32", sQB, "s2", 4)
    pre("s_lshl_b32", sM4K, sW, 12)
    pre("s_lshl_b32", sM2K, sW, 11)
    pre("s_lshr_b32", "s92", sW, 1)
    pre("s_and_b32", "s93", sW, 1)
    pre("s_lshl_b32", "s94", "s92", 5)
    pre("s_lshl_b32", "s95", "s93", 3)
    pre("s_add_u32", "s94", "s94", "s95")
    pre("s_lshl_b32", sMQ, "s94", 8)
    pre("s_lshl_b32", "s95", sW, 5)
    pre("v_add_u32", t1, "s95", Q15)
    pre("v_mul_u32_u24", t1, 896, t1)
    pre("v_lshl_add_u32", "v216", G_, 4, t1)
    pre("s_mov_b32", sXQ, 16 * 896)
    pre("s_lshl_b32", "s97", sQB, 2)
    pre("s_add_u32", "s97", "s97", sW)
    pre("v_lshl_add_u32", t1, L, 6, "s97")
    pre("v_lshrrev_b32", t2, 2, t1)
    pre("v_and_b32", t1, 3, t1)
    pre("v_mul_u32_u24", t3, 3584, t2)
    pre("v_mul_u32_u24", "v218", 72, t1)
    pre("v_add_u32", "v218", "v218", t3)
    pre("v_lshlrev_b32", t1, 7, t1)
    pre("v_lshl_add_u32", "v219", t2, 13, t1)
    pre("s_lshl_b32", "s97", "s97", 10)
    pre("v_lshl_add_u32", "v23", L, 4, "s97")
    pre("v_lshlrev_b32", "v200", 7, L)
    pre("s_waitcnt", "lgkmcnt(0)")
    estamp(-1)

    def srd(dst, ptr, mul_s, mul_c, nrec, sub=False):
        b = int(dst[2:dst.index(":")])
        pre("s_mul_i32", "s96", mul_s, mul_c)
        pre("s_add_u32", f"s{b}", f"s{ptr}", "s96")
        pre("s_addc_u32", f"s{b+1}", f"s{ptr+1}", 0)
        pre("s_and_b32", f"s{b+1}", f"s{b+1}", 0xffff)
        if sub: pre("s_sub_u32", f"s{b+2}", nrec, "s96")
        else: pre("s_mov_b32", f"s{b+2}", nrec)
        pre("s_mov_b32", f"s{b+3}", 0x20000)

    voffT = V(23, 1, "voffT")
    def touch(voff, srd_, soff=0):
        return I("buffer_load_dword", "v22", voff, srd_, soff, mods="offen", tag="touch", meta=dict(touch=True))
    srd(sG, 16, sHEAD, 224, 448 * 3584, sub=True)
    srd(sU, 18, sHEAD, 224, 448 * 3584, sub=True)
    if OPT.get("touch", 1) and not OPT.get("tlate"):
        P.put(-1, touch("v218", sG)); P.put(-1, touch("v218", sU))
    srd(sX, 4, sQB, 128 * 896, 128 * 896)
    if OPT.get("xtouch"):
        for i in range(4):
            pre("s_mul_i32", "s96", sW, 28672)
            pre("s_add_u32", "s96", "s96", min(i * 8192, 28672 - 8192))
            P.put(-1, touch("v200", sX, "s96"))
    xraw = {}
    for k in range(14):
        for qs in range(2):
            xraw[k, qs] = V(XCB + 8 * k + 4 * qs, 4, f"xraw{k}_{qs}")
            if OPT.get("xlin"):
                n = 2 * k + qs
                if n == 0:
                    pre("s_mul_i32", "s96", sW, 28672); pre("v_lshlrev_b32", "v216", 4, L)
                if n % 4 == 0 and n: pre("s_add_u32", "s96", "s96", 4096)
                pre("buffer_load_dwordx4", xraw[k, qs], "v216", sX, "s96", mods=f"offen offset:{1024*(n%4)}", tag=("x", k, qs))
            else:
                pre("buffer_load_dwordx4", xraw[k, qs], "v216", sX, sXQ if qs else 0, mods=f"offen offset:{64*k}", tag=("x", k, qs))
            if OPT.get("xfirst") and k == 0 and qs == 0:
                pre("s_waitcnt", "vmcnt(0)"); estamp(-1)
    estamp(-1)
    if OPT.get("tlate"):
        P.put(-1, touch("v218", sG)); P.put(-1, touch("v218", sU))
    pre("s_lshl_b32", "s95", "s93", 2)
    pre("v_or_b32", KEY, "s95", G_)
    pre("v_lshrrev_b32", t1, 1, Q15)
    pre("v_xor_b32", t1, t1, KEY)
    pre("v_and_b32", t2, 1, L)
    pre("v_lshlrev_b32", t2, 4, t2)
    pre("v_lshl_add_u32", t2, t1, 5, t2)
    pre("s_lshl_b32", "s95", sW, 3)
    pre("v_add_u32", t3, "s95", G_)
    pre("v_mul_u32_u24", t3, 3584, t3)
    pre("v_add_u32", t3, t3, t2)
    pre("v_cmp_eq_u32", "vcc", 7, t1)
    pre("v_mov_b32", "v217", 0x40000000)
    pre("s_nop", 0)
    pre("v_cndmask_b32", voffG, t3, "v217", "vcc")

    units = []
    units += [("G", k) for k in range(14)] + [("Q", n) for n in range(14)] + [("D", j) for j in range(6)]
    units += [("K", 0), ("D", 6)]
    for t in range(63): units += [("K", t + 1), ("V", t)]
    units += [("V", 63)] + [("O", n) for n in range(14)]
    NU = len(units)
    slot = lambda u: u % 8
    voffKV = [V(32 + 24 + i, 1, f"voffKV{i}") for i in range(4)]
    tmpc = [0]

    def dma_ops(u):
        kind, n = units[u]
        sb = slot(u) * 16384
        meta = dict(unit=u, slot=slot(u))
        out = []
        def so(val):
            s = sTMP[tmpc[0] % 4]; tmpc[0] += 1
            return s, I("s_mov_b32", s, val)
        def ld(voff, srd_, soff, off):
            return I("buffer_load_dwordx4", voff, srd_, soff, mods=f"offen offset:{off} lds", tag=("u", u), meta=meta)
        if kind == "G":
            s0, i0 = so(n * 32 * 3584); s1, i1 = so(n * 32 * 3584 + 4 * 3584 - 1024)
            out.append(([I("s_add_u32", "m0", sM2K, sb), i0], ld(voffG, sG, s0, 0)))
            out.append(([i1], ld(voffG, sG, s1, 1024)))
            out.append(([I("s_add_u32", "m0", sM2K, sb + 8192)], ld(voffG, sU, s0, 0)))
            out.append(([], ld(voffG, sU, s1, 1024)))
        elif kind == "Q":
            half, nn = n // 7, n % 7
            for i in range(4):
                s, ii = so(half * 256 + (64 * nn + 16 * (i >> 1) + 4 * (i & 1)) * 8192 - 1024 * (i & 1))
                m = [I("s_add_u32", "m0", sMQ, sb + 4096 * (i >> 1))] if i % 2 == 0 else []
                out.append((m + [ii], ld(voffQ, sWq, s, 1024 * (i & 1))))
        elif kind in "DO":
            base = n * 128 if kind == "D" else (n // 2) * 128 + (n % 2) * 128 * 896
            for i in range(4):
                s, ii = so(base + i * (8 * 896 - 1024))
                m = [I("s_add_u32", "m0", sM4K, sb)] if i == 0 else []
                out.append((m + [ii], ld(voffDO, sWd if kind == "D" else sWo, s, 1024 * i)))
        else:
            s = sOK if kind == "K" else sOV
            for i in range(4):
                m = [I("s_add_u32", "m0", sM4K, sb), I("s_add_u32", s, s, 16384)] if i == 0 else []
                if i == 0 and OPT.get("rot"): m = m[1:] + [I("s_and_b32", s, s, 0xfffff)] + m[:1]
                out.append((m, ld(voffKV[i], sK if kind == "K" else sV, s, 1024 * i)))
        return out

    def dma_now(us):
        for u in us:
            for sal, d in dma_ops(u):
                for x in sal: P.put(-1, x)
                if sal and sal[-1].args[0] == "m0": pre("s_nop", 0)
                P.put(-1, d)
    NPRE = OPT.get("npre", 3)
    dma_now(range(NPRE))
    estamp(-1)
    srd(sWq, 10, sHEAD, 512, 448 * 8192, sub=True)
    if OPT.get("touch", 1): P.put(-1, touch("v219", sWq))
    srd(sWd, 20, sHEAD, 112 * 896, 112 * 896)
    srd(sK, 6, sHEAD, 1 << 20, 1 << 20)
    srd(sV, 8, sHEAD, 1 << 20, 1 << 20)
    srd(sWo, 12, sHEAD, 256 * 896, 256 * 896)
    pre("s_lshl_b32", "s97", sHEAD, 4)
    pre("s_add_u32", "s97", "s97", sQB)
    srd(sP, 26, "s97", PART, DOFF + PART)
    if OPT["stamps"]:
        pre("s_mov_b32", "s98", "s26"); pre("s_mov_b32", "s99", "s27")
    if OPT.get("rot"):
        pre("s_mul_i32", sOK, sHEAD, OPT["rot"] * 16384)
        pre("s_mov_b32", sOV, sOK)
    else:
        pre("s_mov_b32", sOK, -16384 & 0xffffffff)
        pre("s_mov_b32", sOV, -16384 & 0xffffffff)
    pre("s_mov_b32", sTHR, f2u(2.0 ** 30))
    pre("v_add_u32", t3, "s94", G_)
    pre("v_lshl_add_u32", voffQ, t3, 13, t2)
    pre("v_bfe_u32", t1, L, 1, 2)
    pre("v_xor_b32", t1, t1, G_)
    pre("v_and_b32", t2, 1, L)
    pre("v_lshlrev_b32", t2, 4, t2)
    pre("v_lshl_add_u32", t2, t1, 5, t2)
    pre("v_lshrrev_b32", t3, 3, L)
    pre("s_lshl_b32", "s95", sW, 5)
    pre("v_add_u32", t3, "s95", t3)
    pre("v_mul_u32_u24", t3, 896, t3)
    pre("v_add_u32", voffDO, t3, t2)
    pre("s_mul_i32", "s95", sW, 28672)
    pre("v_lshl_add_u32", voffSt, L, 4, "s95")
    pre("v_and_b32", t1, 7, L)
    pre("v_lshlrev_b32", t1, 1, t1)
    pre("v_lshrrev_b32", t2, 3, Q15)
    pre("v_or_b32", t1, t1, t2)
    pre("v_and_b32", t2, 1, G_)
    pre("v_lshl_or_b32", t2, t2, 1, LH)
    pre("v_xor_b32", t1, t1, t2)
    pre("v_lshlrev_b32", t1, 4, t1)
    pre("v_lshl_add_u32", kbase, Q15, 9, t1)
    pre("v_lshl_add_u32", t1, G_, 2, RR)
    pre("v_and_b32", t2, 7, t1)
    pre("v_lshlrev_b32", t2, 5, t2)
    pre("v_lshl_add_u32", t1, t1, 9, t2)
    pre("v_lshlrev_b32", t2, 3, CC)
    pre("v_lshlrev_b32", t3, 4, LH)
    pre("v_xor_b32", t2, t2, t3)
    pre("v_add_u32", vbase, t1, t2)
    pre("v_lshl_or_b32", t1, LH, 1, "s93")
    pre("v_xor_b32", t1, t1, LC)
    if OPT.get("lin"): pre("v_mov_b32", t1, LC)
    pre("v_lshlrev_b32", t1, 4, t1)
    pre("v_lshl_add_u32", t1, LH, 9, t1)
    pre("v_add_u32", voffKV0, sM4K, t1)
    pre("v_lshl_add_u32", t1, G_, 2, RR)
    pre("v_bfe_u32", t2, t1, 1, 2)
    pre("v_lshlrev_b32", t2, 5, t2)
    pre("v_lshl_add_u32", t1, t1, 7, t2)
    pre("v_lshl_add_u32", dobase, CC, 3, t1)
    pre("v_and_b32", t1, 1, G_)
    pre("v_lshl_or_b32", t1, t1, 2, RR)
    pre("v_lshlrev_b32", t1, 5, t1)
    pre("v_lshl_add_u32", t1, CC, 3, t1)
    pre("v_lshl_add_u32", t2, G_, 3, RR)
    pre("v_lshl_add_u32", gq[0], t2, 8, t1)
    for j in range(1, 8): pre("v_xor_b32", gq[j], 32 * j, gq[0])
    for r in range(3): pre("v_cmp_eq_u32", sMASK[r], r + 1, CC)
    pre("v_cmp_eq_u32", sMASK[3], RR, G_)
    ones = V(220, 4, "ones")
    for i in range(4): pre("v_mov_b32", ones[i], 0x3f803f80)

    ring = [0]
    abase = {}
    dsq = []

    def new_frag():
        f = A_(4 * (ring[0] % 16), 4, f"frag{ring[0]}"); ring[0] += 1
        return f

    def rebase(addr, off, g):
        cur = abase.get(addr[0].base, 0)
        want = off & 0x10000
        if want != cur:
            nv = addr[0].new()
            P.put(g - 1, I("v_xor_b32", nv, 0x10000, addr[0]))
            addr[0] = nv; abase[nv.base] = want
        return off & 0xffff

    def rd_tr(g, dst, addr, off, u, dual=False):
        if dual: a, imm = addr[off >> 16], off & 0xffff
        else: imm = rebase(addr, off, g); a = addr[0]
        P.put(g, I("ds_read_b64_tr_b16", dst, a, mods=f"offset:{imm}", meta=dict(unit=u, slot=slot(u))))

    def mf(D, A, B, C=None, k16=False):
        return P.mfma(I("v_mfma_f32_16x16x16_bf16" if k16 else "v_mfma_f32_16x16x32_bf16", D, A, B, D if C is None else C))

    ustart = {}

    def sync(u, g, dma_gaps=None):
        tags = [("u", x) for x in (u + 1, u + 2)]
        P.put(g - 1, I("s_waitcnt", "vmcnt(?)", meta=dict(vm=tags, keep=True)))
        P.put(g, I("s_barrier"))
        if u == 0: return
        grp = []
        for x in (u + 6, u + 7):
            if x < NU: grp += dma_ops(x)
        gs = dma_gaps or [g + 3 + 6 * i for i in range(8)]
        for (sal, d), gg in zip(grp, gs):
            for i, x in enumerate(sal): P.put(gg - len(sal) + i, x)
            P.put(gg, d)

    def lin_touch(g, srd_, off):
        if not OPT.get("touch", 1): return
        P.put(g - 1, I("s_mov_b32", "s96", off)); P.put(g, touch("v23", srd_, "s96"))
    grp = [x for u in range(NPRE, 8) for x in dma_ops(u)]
    for i, (sal, d) in enumerate(grp):
        gg = 2 + 3 * i + (3 if 2 + 3 * i >= 25 else 0)
        for q, x in enumerate(sal): P.put(gg - len(sal) + q, x)
        P.put(gg, d)

    sumacc = [V(224 + 4 * qs, 4, f"sum{qs}") for qs in range(2)]
    pu = V(232, 16, "preunp")
    for k in range(14):
        for qs in range(2):
            g = P.g
            if qs == 0: P.put(g - 1, I("s_waitcnt", "vmcnt(?)", meta=dict(vm=[("x", k, 1)])))
            mf(sumacc[qs], ones, xraw[k, qs], 0 if k == 0 else None)
    if OPT["stamps"] == 2:
        for gg in (0, 13, 26):
            P.raw.add(gg); estamp(gg)
    ops = []
    for qs in range(2):
        for i in range(4):
            ops += [I("v_lshlrev_b32", pu[8 * qs + 2 * i], 16, xraw[0, qs][i]), I("v_and_b32", pu[8 * qs + 2 * i + 1], 0xffff0000, xraw[0, qs][i])]
    P.spread(ops, 2, 18)
    g = P.g - 1
    P.raw.add(g)
    mean = [V(T0 + qs, 1, "mean") for qs in range(2)]
    mr = [st[0], st[1]]; dl = [st[2], st[3]]
    pk = V(T0 + 2, 1, "pk")
    P.put(g, I("s_waitcnt", "vmcnt(?)", meta=dict(vm=[("u", 0)], keep=True)))
    P.put(g, I("s_barrier"))
    g_first_reads = g
    estamp(g)
    if OPT["stamps"] == 2:
        for i in early: P.put(g, I("v_readfirstlane_b32", f"s{4+2*i}", f"v{248+i}"))
        stamp_n[0] = len(early)
        OPT["stamps"] = 0; OPT["_st"] = 1
    late = []
    for qs in range(2): late.append(I("v_mul_f32", mean[qs], f2u(1.0 / 448), sumacc[qs][0]))
    late.append(I("v_cvt_pk_bf16_f32", pk, mean[0], mean[1]))
    late.append(I("v_lshlrev_b32", mr[0], 16, pk))
    late.append(I("v_and_b32", mr[1], 0xffff0000, pk))
    for qs in range(2): late.append(I("v_sub_f32", dl[qs], mean[qs], mr[qs]))
    xc = {}
    for qs in range(2):
        xc[0, qs] = xraw[0, qs].new(f"xc0_{qs}")
        for i in range(8): late.append(I("v_sub_f32", pu[8 * qs + i], pu[8 * qs + i], mr[qs]))
        for i in range(4): late.append(I("v_cvt_pk_bf16_f32", xc[0, qs][i], pu[8 * qs + 2 * i], pu[8 * qs + 2 * i + 1]))

    def center(k):
        o = []
        for qs in range(2):
            xc[k, qs] = xraw[k, qs].new(f"xc{k}_{qs}")
            t = V(T0, 8, "ctmp")
            for i in range(4):
                o += [I("v_lshlrev_b32", t[2 * i], 16, xraw[k, qs][i]), I("v_and_b32", t[2 * i + 1], 0xffff0000, xraw[k, qs][i])]
            for i in range(8): o.append(I("v_sub_f32", t[i], t[i], mr[qs]))
            for i in range(4): o.append(I("v_cvt_pk_bf16_f32", xc[k, qs][i], t[2 * i], t[2 * i + 1]))
        return o

    gqa = [[x] for x in gq]
    clampg = lambda g: max(g, g_first_reads)

    stamp(P.g - 1)
    gacc = {(j, img, qs): V(GB + 16 * j + 8 * qs + 4 * img, 4, f"gacc{j}{img}{qs}") for j in range(7) for img in range(2) for qs in range(2)}
    gram = [A_(192 + 4 * qs, 4, f"gram{qs}") for qs in range(2)]
    for k in range(14):
        u = k
        g0 = ustart[u] = P.g
        nxt = center(k + 1) if k < 13 else []
        for qs in range(2): mf(gram[qs], xc[k, qs], xc[k, qs], 0 if k == 0 else None)
        for j in range(7):
            for img in range(2):
                f = new_frag()
                for e in range(2):
                    rd_tr(clampg(P.g - LEAD + e), f[2 * e:2 * e + 2], gqa[j], slot(u) * 16384 + img * 8192 + 4 * e * 256, u)
                for qs in range(2): mf(gacc[j, img, qs], f, xc[k, qs], 0 if k == 0 else None)
        if k == 0:
            for x in late: P.put(g_first_reads, x)
        if nxt: P.spread(nxt, g0, P.g - 2)
        if u % 2 == 0: sync(u, g0 + 3)
    for i in range(2): lin_touch(ustart[5 + 2 * i] + 24, sWd, 65536 * i)
    for i in range(3): lin_touch(ustart[9 + 2 * i] + 24, (sK, sV, sK)[i], 65536 * (i // 2))
    o = []
    cq, cg, sd = [st[0].new("cq0"), st[1].new("cq1")], [st[2].new("cg0"), st[3].new("cg1")], [st[4], st[5]]
    for qs in range(2):
        t = V(T0, 8, "gtmp")
        for r in range(4): o.append(I("v_accvgpr_read_b32", t[r], gram[qs][r]))
        for r in range(3): o.append(I("v_cndmask_b32", t[0], t[0], t[r + 1], sMASK[r]))
        o.append(I("v_cndmask_b32", t[0], 0, t[0], sMASK[3]))
        for sw in ("v_permlane32_swap_b32", "v_permlane16_swap_b32"):
            o += [I("v_mov_b32", t[1], t[0]), I(sw, t[0], t[1]), I("v_add_f32", t[0], t[0], t[1])]
        o.append(I("v_mul_f32", t[1], dl[qs], dl[qs]))
        o.append(I("v_mul_f32", t[0], f2u(1.0 / 448), t[0]))
        o.append(I("v_sub_f32", t[0], t[0], t[1]))
        o.append(I("v_max_f32", t[0], 0, t[0]))
        rnd = lambda: [I("v_cvt_pk_bf16_f32", t[0], t[0], t[0]), I("v_lshlrev_b32", t[0], 16, t[0])]
        o += rnd()
        o.append(I("v_add_f32", t[0], f2u(1e-5), t[0]))
        o += rnd()
        o.append(I("v_sqrt_f32", t[0], t[0]))
        o += [I("v_cvt_pk_bf16_f32", t[0], t[0], t[0]), I("v_lshlrev_b32", sd[qs], 16, t[0])]
        o.append(I("v_rcp_f32", t[0], sd[qs]))
        o.append(I("v_mul_f32", cq[qs], f2u(LOG2E / 16), t[0]))
        o.append(I("v_mul_f32", cg[qs], f2u(-LOG2E), t[0]))
    stat_ops = o

    stamp(P.g - 1)
    qacc = {(dt, qs): A_(128 + 8 * dt + 4 * qs, 4, f"qacc{dt}_{qs}") for dt in range(16) for qs in range(2)}
    for n in range(14):
        u = 14 + n
        half, nn = n // 7, n % 7
        g0 = ustart[u] = P.g
        for ks in range(2):
            k = 2 * nn + ks
            for j in range(8):
                f = new_frag()
                for e in range(2):
                    rd_tr(P.g - LEAD + e, f[2 * e:2 * e + 2], gqa[j], slot(u) * 16384 + (32 * ks + 4 * e) * 256, u)
                for qs in range(2): mf(qacc[8 * half + j, qs], f, xc[k, qs], 0 if k == 0 else None)
        if u % 2 == 0: sync(u, g0 + 3)
    for i in range(3): lin_touch(ustart[15 + 4 * i] + 24, (sV, sK, sV)[i], 65536 * ((i + 3) // 2))
    P.spread(stat_ops, ustart[13] + 5, ustart[14] + 24)
    hh = {}
    o = []
    for j in range(7):
        for qs in range(2):
            ga, ua = gacc[j, 0, qs], gacc[j, 1, qs]
            for r in range(4): o.append(I("v_mul_f32", ga[r], cg[qs], ga[r]))
            for r in range(4): o.append(I("v_exp_f32", ga[r], ga[r]))
            for r in range(4): o.append(I("v_fma_f32", ga[r], ga[r], sd[qs], sd[qs]))
            for r in range(4): o.append(I("v_rcp_f32", ga[r], ga[r]))
            for r in range(4): o.append(I("v_mul_f32", ua[r], ga[r], ua[r]))
            if j % 2 == 0: hh[j // 2, qs] = ga.new(f"hh{j//2}_{qs}")
            h = hh[j // 2, qs]
            for i in range(2): o.append(I("v_cvt_pk_bf16_f32", h[2 * (j % 2) + i], ua[2 * i], ua[2 * i + 1]))
    gepi = o
    qf = {(ks, qs): A_(64 + 8 * ks + 4 * qs, 4, f"qf{ks}_{qs}") for ks in range(8) for qs in range(2)}

    def qepi(ks, qs):
        t = V(T0, 8, "qtmp")
        o = []
        for i in range(8): o.append(I("v_accvgpr_read_b32", t[i], qacc[2 * ks + i // 4, qs][i % 4]))
        for i in range(8): o.append(I("v_mul_f32", t[i], cq[qs], t[i]))
        for i in range(4): o.append(I("v_cvt_pk_bf16_f32", t[i], t[2 * i], t[2 * i + 1]))
        o += [I("v_permlane16_swap_b32", t[0], t[2]), I("v_permlane16_swap_b32", t[1], t[3])]
        for i in range(4): o.append(I("v_accvgpr_write_b32", qf[ks, qs][i], t[i]))
        return o
    qa = [x for ks in range(4) for qs in range(2) for x in qepi(ks, qs)]
    qb = [x for ks in range(4, 8) for qs in range(2) for x in qepi(ks, qs)]
    gend = P.g
    split = ustart[14] + 24 + (gend - ustart[14] - 24) * len(gepi) // (len(gepi) + len(qa) + 8)
    assert split >= ustart[21] + 4
    P.spread(gepi, ustart[14] + 24, split)
    doa = [[V(62, 1, "do0")], [V(63, 1, "do1")], [V(60, 1, "do2")], [V(61, 1, "do3")]]
    adr = [I("v_xor_b32", doa[s][0], 32 * s, dobase) for s in range(4)]
    adr += [I("v_xor_b32", voffKV[i], 0 if OPT.get("lin") else 64 * i, voffKV0) for i in range(4)]
    P.spread(qa[:104] + adr + qa[104:], split, gend - 1)

    def do_unit(u, B, nks, acc, first, last_half=False):
        done = {}
        for T in range(4):
            for ks in range(nks):
                f = new_frag()
                k16 = last_half and ks == nks - 1
                for e in range(1 if k16 else 2):
                    rd_tr(P.g - LEAD + e, f[2 * e:2 * e + 2], doa[T], slot(u) * 16384 + (32 * ks + 16 * e) * 128, u)
                for qs in range(2):
                    c = 0 if (first and ks == 0) else None
                    if k16: mf(acc[T, qs], f[0:2], B[ks, qs][0:2], c, k16=True)
                    else: mf(acc[T, qs], f, B[ks, qs], c)
            done[T] = P.g - 1
        return done

    def do_epi(acc, p, soff, scale=None):
        o = []
        for qs in range(2):
            a, b = acc[2 * p, qs], acc[2 * p + 1, qs]
            if scale:
                for x in (a, b):
                    for r in range(4): o.append(I("v_mul_f32", x[r], scale[qs], x[r]))
            pkd = a.new("pkd")
            o += [I("v_cvt_pk_bf16_f32", pkd[0], a[0], a[1]), I("v_cvt_pk_bf16_f32", pkd[1], a[2], a[3]),
                  I("v_cvt_pk_bf16_f32", pkd[2], b[0], b[1]), I("v_cvt_pk_bf16_f32", pkd[3], b[2], b[3])]
            if qs == 0: o.append(I("s_mov_b32", sST, soff))
            o.append(None)
            o.append(I("buffer_store_dwordx4", pkd, voffSt, sP, sST, mods=f"offen offset:{(2*qs+p)*1024}", tag="st"))
        return o

    def seq(ops, g0, per=1):
        g = g0; c = 0
        for x in ops:
            if x is None:
                g += 1; c = 0; continue
            P.put(g, x)
            if x.kind != "salu":
                c += 1
                if c >= per: g += 1; c = 0
        return g

    dblk = [128, GB + 16, GB + 48, GB + 80]
    def dacc(j): return {(T, qs): V(dblk[2 * (j % 2) + T // 2] + 8 * (T % 2) + 4 * qs, 4, f"dacc{j}_{T}{qs}") for T in range(4) for qs in range(2)}

    stamp(P.g - 1)
    def d_unit(u, j):
        g0 = ustart[u] = P.g
        acc = dacc(j)
        done = do_unit(u, hh, 4, acc, True, last_half=True)
        for p in range(2): seq(do_epi(acc, p, DOFF + j * 4096), done[2 * p + 1] + 4)
        if u % 2 == 0: sync(u, g0 + 3)
    for j in range(6): d_unit(28 + j, j)
    ka = [[V(32 + 4 * h + i, 1, f"ka{h}{i}") for h in range(2)] for i in range(4)]
    va = [[V(40 + 8 * h + j, 1, f"va{h}{j}") for h in range(2)] for j in range(8)]
    adr = [I("v_xor_b32", ka[i][h], 64 * i + 0x10000 * h, kbase) for i in range(4) for h in range(2)]
    adr += [I("v_xor_b32", va[j][h], 32 * j + 0x10000 * h, vbase) for j in range(8) for h in range(2)]
    P.spread(qb + adr, ustart[28] + 4, P.g - LEAD - 1)

    O = {(dt, qs): V(128 + 8 * dt + 4 * qs, 4, f"O{dt}_{qs}") for dt in range(16) for qs in range(2)}
    Sreg = lambda t, sub, qs: 64 + 16 * (t % 2) + 8 * sub + 4 * qs
    Preg = lambda t, qs: 96 + 8 * (t % 2) + 4 * qs
    negm = [V(112 + 4 * qs, 4, f"negm{qs}") for qs in range(2)]
    lsum = [V(120 + qs, 1, f"l{qs}") for qs in range(2)]
    S, Pv, ps = {}, {}, {}
    slotgap = lambda n: 4 * (n // 3) + (n % 3)

    def k_unit(u, t, rdgap):
        ustart[u] = P.g
        for sub in range(2):
            for qs in range(2): S[t, sub, qs] = V(Sreg(t, sub, qs), 4, f"S{t}_{sub}{qs}")
            for ks in range(8):
                f = new_frag()
                off = slot(u) * 16384 + 8192 * sub + 256 * (ks >> 2)
                P.put(rdgap(8 * sub + ks), I("ds_read_b128", f, ka[ks & 3][off >> 16], mods=f"offset:{off & 0xffff}", meta=dict(unit=u, slot=slot(u))))
                for qs in range(2):
                    c = None if ks else (0 if t == 0 else negm[qs])
                    mf(S[t, sub, qs], f, qf[ks, qs], c)

    def v_unit(u, t, rdgap):
        ustart[u] = P.g
        done = {}
        for dt in range(16):
            f = new_frag()
            for e in range(2):
                rd_tr(rdgap(2 * dt + e), f[2 * e:2 * e + 2], va[dt & 7], slot(u) * 16384 + 8192 * e + 256 * (dt >> 3), u, dual=True)
            for qs in range(2): mf(O[dt, qs], f, Pv[t, qs], 0 if t == 0 else None)
            done[dt] = P.g - 1
        return done

    def softmax_ops(t):
        for qs in range(2):
            Pv[t, qs] = V(Preg(t, qs), 4, f"P{t}_{qs}")
            ps[t, qs] = V(122 + qs, 1, f"ps{t}_{qs}")
        out = []
        n = 0
        for sub in range(2):
            for qs in range(2):
                prev = None
                for r in range(4):
                    e = V(T0 + n % 4, 1, f"e{t}_{n}"); n += 1
                    ex = I("v_exp_f32", e, S[t, sub, qs][r])
                    if sub == 0 and r == 0: ad = None
                    elif sub == 0 and r == 1: ad = I("v_add_f32", ps[t, qs], prev, e)
                    else: ad = I("v_add_f32", ps[t, qs], ps[t, qs], e)
                    cv = I("v_cvt_pk_bf16_f32", Pv[t, qs][2 * sub + r // 2], prev, e) if r % 2 else None
                    out.append((ex, ad, cv)); prev = e
        return out

    def check_ops(t, g, site):
        mx = V(T0 + 4, 1, "mx")
        P.put(g, I("v_max_f32", mx, ps[t, 0], ps[t, 1]))
        P.put(g + 1, I("v_cmp_nge_f32", "vcc", sTHR, mx))
        P.put(g + 3, I("s_cbranch_vccnz", f"L_slow_{site}"))
        P.put(g + 3, I(f"L_back_{site}:"))
        if (site, t % 2) not in slow_sites: slow_sites.append((site, t % 2))
        for qs in range(2): P.put(g + 3 + qs, I("v_add_f32", lsum[qs], lsum[qs], ps[t, qs]))

    for i in range(4): lin_touch(ustart[27 + 2 * i] + 24 if i < 3 else ustart[33] + 28, sWo, 65536 * i)
    stamp(P.g - 1)
    g0 = P.g
    k_unit(34, 0, lambda n: g0 + 2 * n - LEAD)
    sync(34, g0 + 3)
    gk0 = P.g
    d_unit(35, 6)
    o = []
    for qs in range(2):
        t = V(T0 + 4 + 2 * qs, 2, "mtmp")
        a, b = S[0, 0, qs], S[0, 1, qs]
        o += [I("v_max3_f32", t[0], a[0], a[1], a[2]), I("v_max3_f32", t[0], t[0], a[3], b[0]), I("v_max3_f32", t[0], t[0], b[1], b[2]), I("v_max_f32", t[0], t[0], b[3])]
        for sw in ("v_permlane32_swap_b32", "v_permlane16_swap_b32"):
            o += [I("v_mov_b32", t[1], t[0]), I(sw, t[0], t[1]), I("v_max_f32", t[0], t[0], t[1])]
        for r in range(4): o.append(I("v_sub_f32", negm[qs][r], 0, t[0]))
        o.append(I("v_mov_b32", lsum[qs], 0))
    for sub in range(2):
        for qs in range(2):
            for r in range(4): o.append(I("v_add_f32", S[0, sub, qs][r], S[0, sub, qs][r], negm[qs][0]))
    P.spread(o[:30], gk0 + 3, P.g - 2)
    P.spread(o[30:], P.g - 6, P.g + 4)
    sm = {0: softmax_ops(0)}
    gi0 = P.g
    for i, (ex, ad, cv) in enumerate(sm[0]):
        g = gi0 + 1 + (i * 23) // 16
        P.put(g, ex)
        if ad: P.put(g + 1, ad)
        if cv: P.put(g + 1, cv)
    loop_first, loop_n = 2, 14
    loop_g = []
    ROT = 8
    for t in range(63):
        uk, uv = 36 + 2 * t, 37 + 2 * t
        g0 = P.g
        inloop = loop_first <= t < loop_first + 4 * loop_n
        if inloop and (t - loop_first) % 4 == 0:
            loop_g.append(g0)
            P.put(g0 - 1, I("L_loop:", meta=dict(last=True)))
        sg = lambda n: g0 + slotgap(n - ROT + 48) - 64
        k_unit(uk, t + 1, lambda n: sg(n))
        site = f"w{(t - loop_first) % 4}" if inloop else f"p{t}"
        check_ops(t, g0 + 25, site)
        v_unit(uv, t, lambda n: sg(16 + n))
        sync(uk, g0 + 5, dma_gaps=[g0 + x for x in (10, 14, 18, 22, 34, 42, 50, 58)])
        if OPT.get("touch", 1) and t % 2 == 0:
            if t < 52:
                P.put(g0 + 60, I("s_add_u32", "s96", sOK, (8 if t % 4 == 0 else 6) * 16384)); P.put(g0 + 61, touch("v23", sK if t % 4 == 0 else sV, "s96"))
            elif inloop:
                P.put(g0 + 60, I("s_add_u32", "s96", sOK, (8 if t % 4 == 0 else 6) * 16384)); P.put(g0 + 61, touch("v23", sK if t % 4 == 0 else sV, "s96"))
        sm[t + 1] = softmax_ops(t + 1)
        for i, (ex, ad, cv) in enumerate(sm[t + 1]):
            if t + 1 < 63:
                g = g0 + 27 + 4 * i + (4 if i == 0 else 0) * 0
                if i == 0: g = g0 + 30
            else:
                g = g0 + 30 + 2 * i
            P.put(g, ex)
            if ad: P.put(g + 1, ad)
            if cv: P.put(g + (2 if t + 1 < 63 else 1), cv)
        if inloop and (t - loop_first) % 4 == 3:
            P.put(P.g - 2, I("s_sub_u32", sCNT, sCNT, 1))
            P.put(P.g - 1, I("s_cbranch_scc0", "L_loop", meta=dict(last=True)))
        if t == loop_first - 1:
            P.put(g0 + 40, I("s_mov_b32", sCNT, loop_n - 1))
    g0 = P.g
    gl = g0 - 1
    P.raw.add(gl)
    mx = V(T0 + 4, 1, "mx")
    tail = [I("v_max_f32", mx, ps[63, 0], ps[63, 1]), I("v_cmp_nge_f32", "vcc", sTHR, mx), I("s_cbranch_vccnz", "L_slow_last"), I("L_back_last:")]
    slow_sites.append(("last", 1))
    done = v_unit(162, 63, lambda n: g0 + n - LEAD)
    for x in tail: P.put(gl, x)
    sync(162, g0 + 3)
    stamp(P.g - 1)
    o = []
    rl = [st[0].new("rl0"), st[1].new("rl1")]
    lo = []
    for qs in range(2):
        t = V(T0 + 2 * qs, 2, "ltmp")
        lo.append(I("v_add_f32", t[0], lsum[qs], ps[63, qs]))
        for sw in ("v_permlane32_swap_b32", "v_permlane16_swap_b32"):
            lo += [I("v_mov_b32", t[1], t[0]), I(sw, t[0], t[1]), I("v_add_f32", t[0], t[0], t[1])]
        lo.append(I("v_rcp_f32", rl[qs], t[0]))
    of = {}
    for ks in range(8):
        o = []
        for qs in range(2):
            a, b = O[2 * ks, qs], O[2 * ks + 1, qs]
            of[ks, qs] = a.new(f"of{ks}_{qs}")
            x = of[ks, qs]
            o += [I("v_cvt_pk_bf16_f32", x[0], a[0], a[1]), I("v_cvt_pk_bf16_f32", x[1], a[2], a[3]),
                  I("v_cvt_pk_bf16_f32", x[2], b[0], b[1]), I("v_cvt_pk_bf16_f32", x[3], b[2], b[3])]
        gs = max(done[2 * ks + 1] + 4, g0 + 6 + 6 * ks)
        P.spread(o, gs, gs + 6)
    P.spread(lo, g0, g0 + 7)
    for j in range(7):
        acc = {(T, qs): V(64 + 32 * (j % 2) + 8 * T + 4 * qs, 4, f"oacc{j}_{T}{qs}") for T in range(4) for qs in range(2)}
        for half in range(2):
            u = 163 + 2 * j + half
            g0 = ustart[u] = P.g
            done = do_unit(u, {(ks, qs): of[4 * half + ks, qs] for ks in range(4) for qs in range(2)}, 4, acc, half == 0)
            if u % 2 == 0: sync(u, g0 + 3)
        gn = seq(do_epi(acc, 0, j * 4096, rl), done[1] + 4)
        seq(do_epi(acc, 1, j * 4096, rl), max(gn, done[3] + 4))
    gend = max(P.fill) + 1
    stamp(gend)

    lin = P.linear()
    out = []; held = []
    for ins in lin:
        if ins.kind == "mfma":
            held.sort(key=lambda x: x.kind == "label")
            out += held; held = []
        if ins.meta.get("last"): held.append(ins)
        else: out.append(ins)
    lin = out + held
    lin = insert_lgkm(lin, OPT.get('minage', 5))
    lin = resolve_vm(lin)
    check_values(lin)
    lin, probs = check_hazards(lin, fix=True)
    check_lds(lin)
    cost = gap_cost(lin)
    marks = [("sum", 0), ("G", ustart[0]), ("Q", ustart[14]), ("D", ustart[28]), ("K0", ustart[34]), ("it2", ustart[40]), ("it3", ustart[42]), ("V63", ustart[162]), ("O", ustart[163]), ("end", len(P.m))]
    for (n, a), (_, b) in zip(marks, marks[1:]):
        print(f"  model {n}: gaps {b-a} cycles {sum(cost.get(g, 0) for g in range(a, b))}", file=sys.stderr)
    print(f"  nops inserted: {len(probs)}", file=sys.stderr)
    for p in probs[:400]:
        if OPT.get("shownops"): print("   ", p, file=sys.stderr)

    idx = [i for i, x in enumerate(lin) if x.text == "L_loop:"]
    ends = [i for i, x in enumerate(lin) if x.text == "s_cbranch_scc0 L_loop"]
    assert len(idx) == len(ends) == loop_n
    body = [x.text for x in lin[idx[0]:ends[0] + 1]]
    for a, b in zip(idx[1:], ends[1:]):
        other = [x.text for x in lin[a:b + 1]]
        if other != body:
            for q, (x, y) in enumerate(zip(body, other)):
                if x != y: raise RuntimeError(f"loop not periodic at {q}: {x} | {y}")
            raise RuntimeError("loop length differs")
    for a, b in zip(ends, idx[1:]): assert b == a + 1
    q = ends[0] - 1
    while not lin[q].text.startswith(f"s_sub_u32 {sCNT}"):
        assert ("scc", 0) not in lin[q].wr, lin[q].text
        q -= 1
    if OPT.get("novm"): body = [x for x in body if "vmcnt" not in x]
    if OPT.get("nobar"): body = [x for x in body if "s_barrier" not in x]
    if OPT.get("nodma"): body = [x for x in body if " lds" not in x]
    if OPT.get("nolgkm"): body = [x for x in body if "lgkmcnt" not in x]
    if OPT.get("nods"): body = [x for x in body if not x.startswith("ds_read")]
    if OPT.get("notr"): body = [x for x in body if not x.startswith("ds_read_b64")]
    if OPT.get("nob128"): body = [x for x in body if not x.startswith("ds_read_b128")]
    txt = [x.text for x in lin[:idx[0]]] + [".p2align 3"] * 0 + body + [x.text for x in lin[ends[-1] + 1:]]
    if OPT["stamps"] or OPT.get("_st"):
        n = stamp_n[0]
        txt += ["s_waitcnt vmcnt(0)", f"s_memtime s[{4+2*n}:{5+2*n}]", "s_memrealtime s[22:23]", "s_waitcnt lgkmcnt(0)"]
        txt += ["s_add_u32 s28, s98, 0x8000000", "s_addc_u32 s29, s99, 0", "s_and_b32 s29, s29, 0xffff", "s_mov_b32 s30, 0x100000", "s_mov_b32 s31, 0x20000"]
        txt += ["s_lshl_b32 s3, s2, 2", f"s_add_u32 s3, s3, {sW}", "s_lshl_b32 s3, s3, 6", "v_mov_b32 v1, s3"]
        for i in range(n + 1):
            txt += [f"v_mov_b32 v2, s{4+2*i}", f"buffer_store_dword v2, v1, s[28:31], 0 offen offset:{4*i}"]
        txt += ["v_mov_b32 v2, s22", "buffer_store_dword v2, v1, s[28:31], 0 offen offset:60"]
        txt += ["v_mov_b32 v2, s100", "buffer_store_dword v2, v1, s[28:31], 0 offen offset:56", "v_mov_b32 v2, s101", "buffer_store_dword v2, v1, s[28:31], 0 offen offset:52"]
        txt = ["s_memtime s[98:99]", "s_memrealtime s[96:97]", "s_waitcnt lgkmcnt(0)", "s_mov_b32 s100, s98", "s_mov_b32 s101, s96"] + txt
    txt += ["L_end:", "s_endpgm"]
    for site, par in slow_sites:
        txt += [f"L_slow_{site}:", f"s_call_b64 {sRET}, L_rescale{par}", f"s_branch L_back_{site}"]
    for par in range(2):
        r = [f"L_rescale{par}:", "s_nop 15"]
        t0, t1_, dlt, fac = f"v{T0}", f"v{T0+1}", f"v{T0+2}", f"v{T0+3}"
        for qs in range(2):
            a, b = Sreg(par, 0, qs), Sreg(par, 1, qs)
            cur = [a + i for i in range(4)] + [b + i for i in range(4)]
            nx = [Sreg(1 - par, s, qs) + i for s in range(2) for i in range(4)]
            r += [f"v_max3_f32 {dlt}, v{cur[0]}, v{cur[1]}, v{cur[2]}", f"v_max3_f32 {dlt}, {dlt}, v{cur[3]}, v{cur[4]}",
                  f"v_max3_f32 {dlt}, {dlt}, v{cur[5]}, v{cur[6]}", f"v_max3_f32 {dlt}, {dlt}, v{cur[7]}, 0"]
            for sw in ("v_permlane32_swap_b32", "v_permlane16_swap_b32"):
                r += [f"v_mov_b32 {t0}, {dlt}", "s_nop 1", f"{sw} {dlt}, {t0}", "s_nop 1", f"v_max_f32 {dlt}, {dlt}, {t0}"]
            r += [f"v_exp_f32_e64 {fac}, -{dlt}", "s_nop 0"]
            for x in cur + nx + [negm[qs].base + i for i in range(4)]: r.append(f"v_sub_f32 v{x}, v{x}, {dlt}")
            r.append(f"v_mul_f32 v{lsum[qs].base}, v{lsum[qs].base}, {fac}")
            for dt in range(16):
                for i in range(4): r.append(f"v_mul_f32 v{O[dt, qs].base + i}, v{O[dt, qs].base + i}, {fac}")
            for i in range(4):
                r += [f"v_exp_f32 {t0}, v{cur[2*i]}", f"v_exp_f32 {t1_}, v{cur[2*i+1]}", "s_nop 0"]
                r.append(f"v_cvt_pk_bf16_f32 v{Preg(par, qs) + i}, {t0}, {t1_}")
                r.append(f"v_add_f32 {t0}, {t0}, {t1_}")
                r.append(f"v_add_f32 v{122+qs}, v{122+qs}, {t0}" if i else f"v_mov_b32 v{122+qs}, {t0}")
        r += ["s_nop 3", f"s_setpc_b64 {sRET}"]
        txt += r
    txt += ["L_k1_last:", "s_endpgm"]
    return txt


def k2():
    t = []
    A = t.append
    A("s_load_dwordx2 s[4:5], s[0:1], 0")
    A("s_load_dwordx2 s[6:7], s[0:1], 72")
    A("s_load_dwordx2 s[8:9], s[0:1], 88")
    A("s_cmp_ge_u32 s2, 256")
    A("s_cbranch_scc1 L2_end")
    A("v_lshrrev_b32 v1, 6, v0")
    A("v_and_b32 v2, 63, v0")
    A("v_readfirstlane_b32 s3, v1")
    A("s_mul_i32 s10, s2, 7")
    A("s_nop 2")
    A("s_add_u32 s3, s3, s10")
    A("s_lshl_b32 s10, s3, 10")
    A("v_lshl_add_u32 v3, v2, 4, s10")
    A("s_waitcnt lgkmcnt(0)")
    A("s_mov_b32 s12, s8"); A("s_and_b32 s13, s9, 0xffff"); A(f"s_mov_b32 s14, {2*DOFF}"); A("s_mov_b32 s15, 0x20000")
    for h in range(32):
        hh = (h % 2) * 16 + h // 2
        A(f"s_mov_b32 s{30+h}, {hh*PLANE}")
        A(f"buffer_load_dwordx4 v[{32+4*h}:{35+4*h}], v3, s[12:15], s{30+h} offen")
    A("s_mov_b32 s16, s4"); A("s_and_b32 s17, s5, 0xffff"); A(f"s_mov_b32 s18, {2048*896}"); A("s_mov_b32 s19, 0x20000")
    A("s_mov_b32 s20, s6"); A("s_and_b32 s21, s7, 0xffff"); A(f"s_mov_b32 s22, {2048*896}"); A("s_mov_b32 s23, 0x20000")
    A("s_lshr_b32 s24, s3, 2")
    A("s_mul_i32 s25, s24, 9363")
    A("s_lshr_b32 s25, s25, 16")
    A("s_mul_i32 s26, s25, 7")
    A("s_sub_u32 s26, s24, s26")
    A("s_bfe_u32 s27, s3, 0x10001")
    A("s_and_b32 s28, s3, 1")
    A("s_lshl_b32 s25, s25, 1")
    A("s_add_u32 s25, s25, s27")
    A(f"s_mul_i32 s25, s25, {16*896}")
    A("s_lshl_b32 s26, s26, 7")
    A("s_lshl_b32 s28, s28, 6")
    A("s_add_u32 s25, s25, s26")
    A("s_add_u32 s25, s25, s28")
    A("v_and_b32 v4, 15, v2")
    A("v_mul_u32_u24 v4, 896, v4")
    A("v_lshrrev_b32 v5, 4, v2")
    A("v_lshl_add_u32 v4, v5, 3, v4")
    A("v_add_u32 v4, s25, v4")
    A("buffer_load_dwordx2 v[24:25], v4, s[16:19], 0 offen")
    A("buffer_load_dwordx2 v[26:27], v4, s[16:19], 0 offen offset:32")
    for h in range(32):
        A(f"s_waitcnt vmcnt({33-h})")
        acc = 8 + 8 * (h % 2)
        for i in range(4):
            src = 32 + 4 * h + i
            if h < 2:
                A(f"v_lshlrev_b32 v{acc+2*i}, 16, v{src}")
                A(f"v_and_b32 v{acc+2*i+1}, 0xffff0000, v{src}")
            else:
                A(f"v_lshlrev_b32 v28, 16, v{src}")
                A(f"v_and_b32 v29, 0xffff0000, v{src}")
                A(f"v_pk_add_f32 v[{acc+2*i}:{acc+2*i+1}], v[{acc+2*i}:{acc+2*i+1}], v[28:29]")
    def rnd(b):
        for i in range(4):
            A(f"v_cvt_pk_bf16_f32 v28, v{b+2*i}, v{b+2*i+1}")
            A(f"v_lshlrev_b32 v{b+2*i}, 16, v28")
            A(f"v_and_b32 v{b+2*i+1}, 0xffff0000, v28")
    rnd(8); rnd(16)
    for i in range(8): A(f"v_mul_f32 v{32+i}, 0x{f2u(-LOG2E):x}, v{16+i}")
    for i in range(8): A(f"v_exp_f32 v{32+i}, v{32+i}")
    for i in range(8): A(f"v_add_f32 v{32+i}, 1.0, v{32+i}")
    for i in range(8): A(f"v_rcp_f32 v{32+i}, v{32+i}")
    for i in range(8): A(f"v_mul_f32 v{16+i}, v{16+i}, v{32+i}")
    rnd(16)
    for i in range(8): A(f"v_mul_f32 v{8+i}, v{8+i}, v{16+i}")
    rnd(8)
    A("s_waitcnt vmcnt(0)")
    for i in range(4):
        A(f"v_lshlrev_b32 v28, 16, v{24+i}")
        A(f"v_and_b32 v29, 0xffff0000, v{24+i}")
        A(f"v_add_f32 v{8+2*i}, v{8+2*i}, v28")
        A(f"v_add_f32 v{9+2*i}, v{9+2*i}, v29")
        A(f"v_cvt_pk_bf16_f32 v{24+i}, v{8+2*i}, v{9+2*i}")
    A("buffer_store_dwordx2 v[24:25], v4, s[20:23], 0 offen")
    A("buffer_store_dwordx2 v[26:27], v4, s[20:23], 0 offen offset:32")
    A("L2_end:")
    A("s_endpgm")
    return t


def desc(name, vg, acc, sg):
    return [f".amdhsa_kernel {name}", f"  .amdhsa_next_free_vgpr {vg}", f"  .amdhsa_next_free_sgpr {sg}", f"  .amdhsa_accum_offset {acc}",
            "  .amdhsa_group_segment_fixed_size 0", "  .amdhsa_kernarg_size 96", "  .amdhsa_user_sgpr_count 2",
            "  .amdhsa_user_sgpr_kernarg_segment_ptr 1", "  .amdhsa_system_sgpr_workgroup_id_x 1", ".end_amdhsa_kernel"]


def main():
    ref = open(f"ref.txt").read().splitlines()
    head = [l for l in ref if l.startswith(";") and "@launch" not in l and "Override launch" not in l and "grid=ceil" not in l]
    out = head + [f"; @launch kernel={NAME}_kernel grid=(256,1,1) block=(256,1,1) lds=131072",
                  "; @launch kernel=finish_kernel grid=(256,1,1) block=(448,1,1) lds=0",
                  '.amdgcn_target "amdgcn-amd-amdhsa--gfx950"', ".text"]
    for n, body in ((f"{NAME}_kernel", k1()), ("finish_kernel", k2())):
        out += [f".globl {n}", ".p2align 8", f".type {n},@function", f"{n}:"]
        out += [("" if l.endswith(":") else "    ") + l for l in body]
    out += ['.section .rodata,"a"', ".p2align 6"] + desc(f"{NAME}_kernel", 512, 256, 102) + [".p2align 6"] + desc("finish_kernel", 160, 160, 64)
    open(sys.argv[1], "w").write("\n".join(out) + "\n")


main()
```

```python
import re, itertools

_ids = itertools.count(1)


class Val:
    def __init__(self, f, base, n=1, name="", vid=None):
        self.f, self.base, self.n, self.name = f, base, n, name
        self.id = vid if vid is not None else next(_ids)

    def __getitem__(self, k):
        if isinstance(k, slice):
            a = k.start or 0
            b = self.n if k.stop is None else k.stop
            assert 0 <= a < b <= self.n, (self.name, k)
            return Val(self.f, self.base + a, b - a, self.name, self.id)
        assert 0 <= k < self.n, (self.name, k)
        return Val(self.f, self.base + k, 1, self.name, self.id)

    def regs(self):
        return [(self.f, self.base + i) for i in range(self.n)]

    def new(self, name=None):
        return Val(self.f, self.base, self.n, name or self.name)

    def __str__(self):
        if self.n == 1:
            return f"{self.f}{self.base}"
        return f"{self.f}[{self.base}:{self.base + self.n - 1}]"


TRANS = ("v_exp_f32", "v_log_f32", "v_rcp_f32", "v_rsq_f32", "v_sqrt_f32")
_reg_re = re.compile(r"^(-|abs\()?([vas])(\d+)\)?$")
_rng_re = re.compile(r"^([vas])\[(\d+):(\d+)\]$")


def _opregs(op):
    op = op.strip()
    m = _reg_re.match(op)
    if m:
        return [(m.group(2), int(m.group(3)))]
    m = _rng_re.match(op)
    if m:
        return [(m.group(1), i) for i in range(int(m.group(2)), int(m.group(3)) + 1)]
    if op in ("vcc", "m0", "exec", "scc"):
        return [(op, 0)]
    if op in ("vcc_lo", "vcc_hi"):
        return [("vcc", 0)]
    return []


class I:
    def __init__(self, op, *args, mods="", tag=None, meta=None):
        self.op = op
        self.args = args
        self.mods = mods
        self.tag = tag
        self.meta = meta or {}
        self.text = op + (" " + ", ".join(str(a) for a in args) if args else "") + ((" " + mods) if mods else "")
        self._classify()

    def _classify(self):
        op, args = self.op, self.args
        nd = 1
        rw = False
        xr, xw = [], []
        if op.startswith("v_mfma"):
            k = "mfma"
        elif op.startswith("ds_read"):
            k = "ds"
        elif op.startswith("ds_write"):
            k = "ds"; nd = 0
        elif op.startswith("buffer_load") or op.startswith("global_load"):
            k = "vmem"
            if " lds" in (" " + self.mods):
                nd = 0; xr.append(("m0", 0))
        elif op.startswith("buffer_store") or op.startswith("global_store") or op.startswith("buffer_atomic"):
            k = "vmem"; nd = 0
        elif op.startswith("v_permlane"):
            k = "valu"; nd = 2; rw = True
        elif op.startswith("v_"):
            k = "trans" if op.replace("_e64", "").replace("_e32", "") in TRANS else "valu"
            if op.startswith("v_fmac") or op.startswith("v_dot2c"):
                rw = True
        elif op == "s_waitcnt":
            k = "wait"; nd = 0
        elif op == "s_barrier":
            k = "bar"; nd = 0
        elif op == "s_nop":
            k = "nop"; nd = 0
        elif op.startswith("s_cbranch") or op in ("s_branch", "s_endpgm", "s_setpc_b64"):
            k = "br"; nd = 0
            if "vcc" in op: xr.append(("vcc", 0))
            if "scc" in op: xr.append(("scc", 0))
        elif op.startswith("s_cmp") or op.startswith("s_bitcmp"):
            k = "salu"; nd = 0; xw.append(("scc", 0))
        elif op.startswith("s_load") or op.startswith("s_mem"):
            k = "smem"
        elif op.endswith(":") or op.startswith("."):
            k = "label"; nd = 0
        elif op.startswith("s_"):
            k = "salu"
            if not (op.startswith("s_mov") or op.startswith("s_mul") or op.startswith("s_getpc") or op.startswith("s_setprio") or op.startswith("s_cselect") or op.startswith("s_ff1") or op.startswith("s_bitset")):
                xw.append(("scc", 0))
            if op.startswith("s_addc") or op.startswith("s_subb") or op.startswith("s_cselect"):
                xr.append(("scc", 0))
            if op.startswith("s_setprio"): nd = 0
            if op.startswith("s_bitset"): rw = True
        else:
            raise ValueError(op)
        self.kind = k
        self.wr, self.rd = list(xw), list(xr)
        self.wvals, self.rvals = [], []
        for i, a in enumerate(args):
            regs = a.regs() if isinstance(a, Val) else _opregs(str(a))
            if isinstance(a, Neg): regs = a.v.regs()
            v = a.v if isinstance(a, Neg) else a
            if i < nd:
                self.wr += regs
                if isinstance(v, Val): self.wvals.append(v)
                if rw:
                    self.rd += regs
                    if isinstance(v, Val) and not self.meta.get("norcheck"): self.rvals.append(v)
            else:
                self.rd += regs
                if isinstance(v, Val): self.rvals.append(v)
        if k == "mfma":
            self.D = set(self.wr)
            g = lambda a: set(a.regs() if isinstance(a, Val) else _opregs(str(a)))
            self.A, self.B, self.C = g(args[1]), g(args[2]), g(args[3])
            self.passes = 8 if "32x32" in op else 4
        self.wr, self.rd = set(self.wr), set(self.rd)

    def states(self):
        if self.kind == "nop": return int(self.args[0]) + 1
        if self.kind == "label": return 0
        return 1


class Neg:
    def __init__(self, v): self.v = v
    def __str__(self): return "-" + str(self.v)


_ORDER = {"wait": 0, "salu": 0, "bar": 0, "br": 0, "nop": 0, "label": 0, "smem": 0, "ds": 1, "vmem": 2, "valu": 3, "trans": 3}


class Prog:
    def __init__(self):
        self.m = []
        self.fill = {}
        self.raw = set()

    @property
    def g(self):
        return len(self.m)

    def mfma(self, ins):
        self.m.append(ins)
        return len(self.m) - 1

    def put(self, g, ins):
        self.fill.setdefault(max(g, -1), []).append(ins)

    def spread(self, items, g0, g1, skip=None):
        gs = [g for g in range(g0, g1) if not (skip and skip(g))]
        n = len(items)
        for i, it in enumerate(items):
            g = gs[min(len(gs) - 1, i * len(gs) // n)]
            for x in (it if isinstance(it, (list, tuple)) else [it]):
                self.put(g, x)

    def fillv(self, items, g0, g1):
        def load(g):
            f = self.fill.get(g, [])
            x = sum({"valu": 1, "trans": 2, "vmem": 2, "ds": 1}.get(i.kind, 0) for i in f)
            return x
        gs = list(range(g0, g1))
        ld = [load(g) for g in gs]
        n = len(items)
        lvl = 1
        while sum(max(0, lvl - x) for x in ld) < n: lvl += 1
        base = [max(0, lvl - 1 - x) for x in ld]
        top = [i for i, x in enumerate(ld) if x < lvl]
        extra = n - sum(base)
        for k in range(extra): base[top[k * len(top) // extra]] += 1
        it = iter(items)
        for g, c in zip(gs, base):
            for _ in range(c): self.put(g, next(it))

    def linear(self):
        out = []
        last = max([len(self.m) - 1] + list(self.fill))
        for g in range(-1, last + 1):
            if 0 <= g < len(self.m):
                self.m[g].gap = g
                out.append(self.m[g])
            f = self.fill.get(g, [])
            if g not in self.raw and g != -1 and g < len(self.m) - 1:
                s = sorted(range(len(f)), key=lambda i: (_ORDER[f[i].kind], i))
                for x in range(len(s)):
                    for y in range(x + 1, len(s)):
                        if s[x] > s[y]:
                            a, b = f[s[y]], f[s[x]]
                            if (a.wr & (b.rd | b.wr)) or (a.rd & b.wr):
                                raise RuntimeError(f"gap {g}: reordering conflict {a.text} / {b.text}")
                f = [f[i] for i in s]
            for x in f:
                x.gap = g
                out.append(x)
        return out


def insert_lgkm(lin, minage=5):
    out = []
    ds = []
    done = 0
    pend = {}
    for ins in lin:
        need = -1
        for r in (ins.rd | ins.wr):
            if r in pend and pend[r] >= done:
                need = max(need, pend[r])
        if ins.meta.get("lgkm0"):
            need = len(ds) - 1 if len(ds) > done else -1
        if need >= 0:
            pos = len(out)
            if ins.kind == "mfma":
                p = len(out)
                while p > 0 and out[p - 1].kind not in ("mfma", "label", "br"):
                    p -= 1
                nds_before = len(ds) - sum(1 for x in out[p:] if x.kind == "ds")
                if need < nds_before and p > 0 and out[p - 1].kind == "mfma":
                    pos = p
            nds = len(ds) - sum(1 for x in out[pos:] if x.kind == "ds")
            j = need
            while j + 1 < nds and ds[j + 1][0] <= ins.gap - minage:
                j += 1
            n = nds - 1 - j
            if n > 15:
                n = 15; j = nds - 1 - 15
                assert j >= need
            w = I("s_waitcnt", f"lgkmcnt({n})")
            w.gap = out[pos - 1].gap if pos > 0 else -1
            w.meta["ds_done"] = j + 1
            out.insert(pos, w)
            done = j + 1
        if ins.kind == "wait" and "lgkmcnt(0)" in ins.text:
            done = len(ds); ins.meta["ds_done"] = done
        if ins.kind == "ds":
            ins.ds_idx = len(ds)
            for r in ins.wr: pend[r] = len(ds)
            ds.append((ins.gap, ins.wr))
        out.append(ins)
    return out


def resolve_vm(lin):
    vm = []
    done = 0
    pend = {}
    out = []
    for ins in lin:
        if ins.kind == "wait" and "vm" in ins.meta:
            tags = ins.meta["vm"]
            idx = [i for i, t in enumerate(vm) if t in tags]
            if tags == "all": idx = list(range(len(vm)))
            last = max(idx) if idx else -1
            n = min(63, len(vm) - 1 - last)
            if last < done and not ins.meta.get("keep"):
                ins.meta["vm_done"] = done
                if ins.meta.get("drop_ok", True):
                    continue
            ins.text = f"s_waitcnt vmcnt({n})"
            done = max(done, len(vm) - n)
            ins.meta["vm_done"] = done
        else:
            for r in (ins.rd | ins.wr):
                if r in pend and pend[r] >= done and not ins.meta.get("touch"):
                    raise RuntimeError(f"vm load result not waited: {ins.text}")
        if ins.kind == "vmem":
            ins.vm_idx = len(vm)
            for r in ins.wr: pend[r] = len(vm)
            vm.append(ins.tag)
        out.append(ins)
    return out


def check_values(lin):
    own = {}
    final = {}
    for ins in lin:
        if ins.kind == "mfma":
            for v in ins.wvals:
                if v.id in final:
                    raise RuntimeError(f"accumulator {v.name} written by {ins.text} (gap {ins.gap}) after it was consumed by {final[v.id]}")
            for v in ins.rvals[:2]: final.setdefault(v.id, ins.text)
        elif not ins.meta.get("init"):
            for v in ins.rvals + ins.wvals: final.setdefault(v.id, ins.text)
        for v in ins.rvals:
            for r in v.regs():
                if own.get(r, (None,))[0] != v.id:
                    raise RuntimeError(f"value check: {ins.text} (gap {ins.gap}) expects {v.name}#{v.id} in {r}, found {own.get(r)}")
        wv = set()
        for v in ins.wvals:
            for r in v.regs():
                own[r] = (v.id, v.name); wv.add(r)
        for r in ins.wr:
            if r not in wv and r[0] in "va":
                own[r] = (None, "raw:" + ins.text)


def check_hazards(lin, fix=False):
    out = []
    probs = []
    W = 24
    for ins in lin:
        need = 0
        dist = 0
        for p in reversed(out[-W:]):
            req = 0
            isvalu = lambda x: x.kind in ("valu", "trans")
            if p.kind == "mfma":
                n = p.passes
                if ins.kind == "mfma":
                    if p.D & ins.C and not (p.D == ins.C and p.passes == ins.passes): req = max(req, n + 2)
                    if p.D & (ins.A | ins.B): req = max(req, n + 4)
                    if p.D & ins.D and not (p.D == ins.C): req = max(req, 0)
                elif isvalu(ins) or ins.kind in ("ds", "vmem"):
                    if p.D & (ins.rd | ins.wr): req = max(req, n + 4)
                    if isvalu(ins) and (p.C & ins.wr): req = max(req, n - 1)
            if isvalu(p):
                vw = {r for r in p.wr if r[0] in "va"}
                sw = {r for r in p.wr if r[0] in ("s", "vcc")}
                if ins.kind == "mfma" and vw & ins.rd: req = max(req, 2)
                if ins.op.startswith("v_permlane") and vw & ins.rd: req = max(req, 2)
                if ins.op.startswith("v_read") and vw & ins.rd: req = max(req, 1)
                if "dpp" in ins.op and vw & ins.rd: req = max(req, 2)
                if p.kind == "trans" and ins.kind == "valu" and vw & ins.rd: req = max(req, 1)
                if isvalu(ins) and sw & ins.rd: req = max(req, 2)
                if ins.kind == "vmem" and sw & ins.rd: req = max(req, 5)
                if ins.kind == "salu" and sw & ins.rd: req = max(req, 1)
            if p.kind == "salu" and ("m0", 0) in p.wr and ins.kind == "vmem" and ("m0", 0) in ins.rd: req = max(req, 1)
            if p.kind == "vmem" and "store_dwordx4" in p.op:
                data = set(p.args[0].regs()) if isinstance(p.args[0], Val) else set(_opregs(str(p.args[0])))
                if data & ins.wr: req = max(req, 2)
            if req > dist:
                need = max(need, req - dist)
                if not fix: probs.append(f"hazard: {p.text} -> {ins.text} needs {req}, has {dist} (gap {ins.gap})")
            dist += p.states()
        if need and fix:
            nop = I("s_nop", need - 1); nop.gap = ins.gap; nop.meta["fix"] = True
            probs.append(f"nop {need} before {ins.text} (gap {ins.gap})")
            out.append(nop)
        out.append(ins)
    return out, probs


def check_lds(lin):
    vm_done = 0; ds_done = 0
    pub_vm = 0; pub_ds = 0
    dma_last = {}
    rd_last = {}
    slot_unit = {}
    for ins in lin:
        if ins.kind == "wait":
            vm_done = max(vm_done, ins.meta.get("vm_done", 0)); ds_done = max(ds_done, ins.meta.get("ds_done", 0))
        if ins.kind == "bar":
            pub_vm, pub_ds = vm_done, ds_done
        if ins.kind == "vmem" and "unit" in ins.meta:
            u, s = ins.meta["unit"], ins.meta["slot"]
            if rd_last.get(s, -1) >= pub_ds:
                raise RuntimeError(f"LDS WAR: DMA of unit {u} into slot {s} (gap {ins.gap}) before readers were fenced")
            dma_last[u] = ins.vm_idx; slot_unit[s] = u
        if ins.kind == "ds" and "unit" in ins.meta:
            u, s = ins.meta["unit"], ins.meta["slot"]
            if slot_unit.get(s) != u:
                raise RuntimeError(f"LDS: read of unit {u} finds unit {slot_unit.get(s)} in slot {s} (gap {ins.gap})")
            if dma_last[u] >= pub_vm:
                raise RuntimeError(f"LDS RAW: read of unit {u} (gap {ins.gap}) before its DMA was published")
            rd_last[s] = ins.ds_idx


def gap_cost(lin):
    cost = {}
    cur = None; t = 0; prev = None
    def close():
        if cur is not None:
            tt = t
            cost[cur] = max(16, tt)
    for ins in lin:
        if ins.kind == "mfma":
            if cur is not None:
                tt = t + (4 if prev == "ds" else 0)
                cost[cur] = max(16, tt)
            cur = ins.gap; t = 4; prev = "mfma"
            continue
        if cur is None or ins.kind == "label": continue
        k = ins.kind
        if k in ("ds", "vmem", "valu", "trans"): t = max(t, 8)
        if k in ("ds", "vmem") and prev in ("valu", "trans"): t += 4
        t += {"trans": 8, "vmem": 8}.get(k, 4 * ins.states())
        if ins.op.startswith("v_permlane"): t += 4
        prev = k
    close()
    return cost
```

```python
import sys, struct
from asmlib import *

NAME = "recurrent_scan__mha_block_cached__glu_gated_glu__prompt"
OPT = dict(stamps=False)
for a in sys.argv[2:]:
    k, v = a.split("="); OPT[k] = int(v)

f2u = lambda x: struct.unpack("<I", struct.pack("<f", x))[0]
LOG2E = 1.4426950408889634
PART = 114688
PLANE = 16 * PART
DOFF = 16 * PLANE
LEAD = 11

sX, sG, sU, sWq, sWd, sK, sV, sWo, sP = [f"s[{b}:{b+3}]" for b in range(28, 64, 4)]
sHEAD, sQB, sW, sM4K, sM2K, sMQ, sOK, sOV = "s64 s65 s66 s67 s68 s69 s70 s71".split()
sTMP = ["s72", "s73", "s74", "s75"]
sCNT, sTHR, sRET = "s76", "s77", "s[78:79]"
sMASK = ["s[80:81]", "s[82:83]", "s[84:85]", "s[86:87]"]
sXQ = "s88"
sST = "s89"

sDBG, sR, sOut = "s[4:7]", "s[8:11]", "s[12:15]"
sRB, sOB, sBIT, sQ16, sDH, sHUGE3 = "s92", "s93", "s94", "s95", "s3", "s97"
sFL, sTHRP, sGO, sAT = "s[16:19]", "s26", "s27", "s1"
FOFF = 2 * DOFF
STS = [20, 22, 24, 68, 84, 82, 80, 86, 70, 78, 72]
OOB = 0x80000000

V = lambda b, n=1, name="": Val("v", b, n, name)
A_ = lambda b, n=1, name="": Val("a", b, n, name)


def k1():
    P = Prog()
    pre = lambda *a, **k: P.put(-1, I(*a, **k))
    slow_sites = []
    stamp_n = [0]

    def stamp(g):
        if not OPT["stamps"]: return
        i = stamp_n[0]; stamp_n[0] += 1
        P.put(g, I("s_memtime", f"s[{STS[i]}:{STS[i]+1}]"))
    early = []
    def estamp(g):
        if OPT["stamps"] != 2: return
        i = len(early); early.append(i)
        P.put(g, I("s_memtime", "s[78:79]")); P.put(g, I("s_waitcnt", "lgkmcnt(0)")); P.put(g, I("v_mov_b32", f"v{248+i}", "s78"))

    tid = V(0, 1, "tid")
    gq = [V(8 + j, 1, f"gq{j}") for j in range(8)]
    voffG, voffQ, voffDO, voffSt, kbase, vbase, voffKV0, dobase = [V(i, 1, n) for i, n in zip(range(0, 8), "voffG voffQ voffDO voffSt kbase vbase voffKV0 dobase".split())]
    st = [V(16 + i, 1, f"st{i}") for i in range(6)]
    T0 = 24
    XCB, GB = 32, 144

    pre("s_load_dwordx16", "s[4:19]", "s[0:1]", 0)
    pre("s_load_dwordx8", "s[20:27]", "s[0:1]", 64)
    pre("s_cmp_ge_u32", "s2", 256)
    pre("s_cbranch_scc1", "L_end")
    HX = OPT.get("hx", 2)
    LNW = 6 if HX == 2 else 5
    L, Q15, G_, RR, CC, LH, LC, t1, t2, t3, KEY = [f"v{204+i}" for i in range(11)]
    pre("s_getpc_b64", "s[90:91]")
    pre("L_pc0:")
    pre("s_lshr_b32", "s97", "s2", 3)
    pre("s_and_b32", "s96", "s97", 15)
    pre("s_lshl_b32", "s96", "s96", 13)
    pre("v_lshl_add_u32", "v200", "v0", 5, "s96")
    pre("v_min_u32", "v200", "L_k1_last-L_pc0", "v200")
    pre("global_load_dword", "v202", "v200", "s[90:91]", tag="code")
    pre("v_lshrrev_b32", t1, 6, "v0")
    pre("v_and_b32", L, 63, "v0")
    pre("v_readfirstlane_b32", sW, t1)
    pre("v_and_b32", Q15, 15, L)
    pre("v_lshrrev_b32", G_, 4, L)
    pre("v_lshrrev_b32", RR, 2, Q15)
    pre("v_and_b32", CC, 3, L)
    pre("v_lshrrev_b32", LH, 5, L)
    pre("v_and_b32", LC, 31, L)
    if HX == 2:
        pre("s_and_b32", "s3", "s2", 7)
        pre("s_lshl_b32", "s3", "s3", 1)
        pre("s_and_b32", sHEAD, "s97", 1)
        pre("s_add_u32", sHEAD, sHEAD, "s3")
        pre("s_lshr_b32", sQB, "s97", 1)
        pre("s_lshl_b32", "s97", sQB, 2)
    else:
        pre("s_and_b32", "s3", "s2", 6)
        pre("s_lshl_b32", "s3", "s3", 1)
        pre("s_and_b32", sHEAD, "s97", 3)
        pre("s_add_u32", sHEAD, sHEAD, "s3")
        pre("s_and_b32", "s3", "s2", 1)
        pre("s_lshl_b32", "s3", "s3", 3)
        pre("s_lshr_b32", sQB, "s97", 2)
        pre("s_lshl_b32", "s97", sQB, 2)
        pre("s_add_u32", sQB, sQB, "s3")
    pre("s_add_u32", "s97", "s97", sW)
    pre("s_lshl_b32", sM4K, sW, 12)
    pre("s_lshl_b32", sM2K, sW, 11)
    pre("s_lshr_b32", "s92", sW, 1)
    pre("s_and_b32", "s93", sW, 1)
    pre("s_lshl_b32", "s94", "s92", 5)
    pre("s_lshl_b32", "s95", "s93", 3)
    pre("s_add_u32", "s94", "s94", "s95")
    pre("s_lshl_b32", sMQ, "s94", 8)
    pre("s_lshl_b32", "s95", "s93", 2)
    pre("v_or_b32", KEY, "s95", G_)
    pre("v_lshrrev_b32", t1, 1, Q15)
    pre("v_xor_b32", t1, t1, KEY)
    pre("v_and_b32", t2, 1, L)
    pre("v_lshlrev_b32", t2, 4, t2)
    pre("v_lshl_add_u32", t2, t1, 5, t2)
    pre("s_lshl_b32", "s95", sW, 3)
    pre("v_add_u32", t3, "s95", G_)
    pre("v_mul_u32_u24", t3, 3584, t3)
    pre("v_add_u32", t3, t3, t2)
    pre("v_cmp_eq_u32", "vcc", 7, t1)
    pre("v_mov_b32", "v217", 0x40000000)
    pre("v_add_u32", t1, "s94", G_)
    pre("v_cndmask_b32", voffG, t3, "v217", "vcc")
    pre("v_lshl_add_u32", voffQ, t1, 13, t2)
    pre("v_lshrrev_b32", t3, 3, L)
    pre("s_lshl_b32", "s95", sW, 5)
    pre("v_add_u32", t3, "s95", t3)
    pre("v_mul_u32_u24", "v215", 896, t3)
    pre("v_and_b32", t1, 7, L)
    pre("v_xor_b32", t1, t1, G_)
    pre("v_lshl_add_u32", "v216", t1, 4, "v215")
    pre("v_xor_b32", "v217", 64, "v216")
    pre("s_mul_i32", sXQ, sW, 28672)
    pre("s_waitcnt", "lgkmcnt(0)")
    estamp(-1)

    def srd(dst, ptr, mul_s, mul_c, nrec, sub=False):
        b = int(dst[2:dst.index(":")])
        pre("s_mul_i32", "s96", mul_s, mul_c)
        pre("s_add_u32", f"s{b}", f"s{ptr}", "s96")
        pre("s_addc_u32", f"s{b+1}", f"s{ptr+1}", 0)
        pre("s_and_b32", f"s{b+1}", f"s{b+1}", 0xffff)
        if sub: pre("s_sub_u32", f"s{b+2}", nrec, "s96")
        else: pre("s_mov_b32", f"s{b+2}", nrec)
        pre("s_mov_b32", f"s{b+3}", 0x20000)

    def touch(voff, srd_, soff=0):
        return I("buffer_load_dword", "v22", voff, srd_, soff, mods="offen", tag="touch", meta=dict(touch=True))
    srd(sG, 16, sHEAD, 224, 448 * 3584, sub=True)
    srd(sU, 18, sHEAD, 224, 448 * 3584, sub=True)

    units = []
    units += [("G", k) for k in range(14)] + [("Q", n) for n in range(7)]
    mix = OPT.get("mix", "QDQQDQQDQDQDD")
    if mix == 0: mix = "QQQQQQQDDDDDD"
    if mix == 1: mix = "QQDQDQDQDQQDD"
    if mix == 2: mix = "QQQDQDQDQQDDD"
    cn = {"Q": 7, "D": 0}
    for c in mix:
        units.append((c, cn[c])); cn[c] += 1
    assert cn == {"Q": 14, "D": 6}
    units += [("K", 0), ("D", 6)]
    for t in range(63): units += [("K", t + 1), ("V", t)]
    units += [("V", 63)] + [("O", n) for n in range(14)]
    NU = len(units)
    slot = lambda u: u % 8
    voffKV = [V(60 + i, 1, f"voffKV{i}") for i in range(4)]
    tmpc = [0]

    def dma_ops(u):
        kind, n = units[u]
        sb = slot(u) * 16384
        meta = dict(unit=u, slot=slot(u))
        out = []
        def so(val):
            s = sTMP[tmpc[0] % 4]; tmpc[0] += 1
            return s, I("s_mov_b32", s, val)
        def ld(voff, srd_, soff, off):
            return I("buffer_load_dwordx4", voff, srd_, soff, mods=f"offen offset:{off} lds", tag=("u", u), meta=meta)
        if kind == "G":
            s0, i0 = so(n * 32 * 3584); s1, i1 = so(n * 32 * 3584 + 4 * 3584 - 1024)
            out.append(([I("s_add_u32", "m0", sM2K, sb), i0], ld(voffG, sG, s0, 0)))
            out.append(([i1], ld(voffG, sG, s1, 1024)))
            out.append(([I("s_add_u32", "m0", sM2K, sb + 8192)], ld(voffG, sU, s0, 0)))
            out.append(([], ld(voffG, sU, s1, 1024)))
        elif kind == "Q":
            half, nn = n // 7, n % 7
            for i in range(4):
                s, ii = so(half * 256 + (64 * nn + 16 * (i >> 1) + 4 * (i & 1)) * 8192 - 1024 * (i & 1))
                m = [I("s_add_u32", "m0", sMQ, sb + 4096 * (i >> 1))] if i % 2 == 0 else []
                out.append((m + [ii], ld(voffQ, sWq, s, 1024 * (i & 1))))
        elif kind in "DO":
            base = n * 128 if kind == "D" else (n // 2) * 128 + (n % 2) * 128 * 896
            for i in range(4):
                s, ii = so(base + i * (8 * 896 - 1024))
                m = [I("s_add_u32", "m0", sM4K, sb)] if i == 0 else []
                out.append((m + [ii], ld(voffDO, sWd if kind == "D" else sWo, s, 1024 * i)))
        else:
            s = sOK if kind == "K" else sOV
            for i in range(4):
                m = [I("s_add_u32", "m0", sM4K, sb), I("s_add_u32", s, s, 16384)] if i == 0 else []
                if i == 0 and OPT.get("rot"): m = m[1:] + [I("s_and_b32", s, s, 0xfffff)] + m[:1]
                out.append((m, ld(voffKV[i], sK if kind == "K" else sV, s, 1024 * i)))
        return out

    def dma_now(us):
        for u in us:
            for sal, d in dma_ops(u):
                for x in sal: P.put(-1, x)
                if sal and sal[-1].args[0] == "m0": pre("s_nop", 0)
                P.put(-1, d)
    NPRE = 3
    XB = 49152
    dma_now(range(OPT.get("npre", 2)))
    srd(sX, 4, sQB, 128 * 896, 128 * 896)
    pre("s_and_b32", "s96", sHEAD, 1 if OPT.get("xrev", 1) else 0)
    pre("s_cselect_b32", "s3", -1, 1)
    pre("s_cselect_b32", "s96", 768, 0)
    pre("s_lshl_b32", "s3", "s3", 7)
    for j in range(7):
        pre("s_lshl_b32", "s95", "s96", 5)
        pre("s_add_u32", "s95", "s95", sXQ)
        pre("s_add_u32", "m0", "s95", XB)
        for rho in range(4):
            sx = sTMP[rho]
            pre("s_add_u32", sx, "s96", rho * 6144)
            pre("buffer_load_dwordx4", "v217" if rho & 1 else "v216", sX, sx, mods=f"offen offset:{1024*rho} lds", tag="x")
        if j < 6: pre("s_add_u32", "s96", "s96", "s3")
    estamp(-1)
    dma_now(range(OPT.get("npre", 2), NPRE))
    pre("v_lshl_add_u32", t1, L, LNW, "s97")
    pre("v_lshrrev_b32", t2, 2, t1)
    pre("v_and_b32", t1, 3, t1)
    pre("v_mul_u32_u24", t3, 3584, t2)
    pre("v_mul_u32_u24", "v218", 72, t1)
    pre("v_add_u32", "v218", "v218", t3)
    pre("v_lshlrev_b32", t1, 7, t1)
    pre("v_lshl_add_u32", st[5], t2, 13, t1)
    pre("s_lshl_b32", "s97", "s97", 16 - LNW)
    pre("v_lshl_add_u32", "v23", L, 10 - LNW, "s97")
    P.put(-1, touch("v218", sG)); P.put(-1, touch("v218", sU))
    estamp(-1)
    srd(sWq, 10, sHEAD, 512, 448 * 8192, sub=True)
    srd(sWd, 20, sHEAD, 112 * 896, 112 * 896)
    srd(sK, 6, sHEAD, 1 << 20, 1 << 20)
    srd(sV, 8, sHEAD, 1 << 20, 1 << 20)
    srd(sWo, 12, sHEAD, 256 * 896, 256 * 896)
    pre("s_lshl_b32", "s97", sHEAD, 4)
    pre("s_add_u32", "s97", "s97", sQB)
    srd(sP, 26, "s97", PART, DOFF + PART)
    if OPT["stamps"]:
        pre("s_mov_b32", "s98", "s26"); pre("s_mov_b32", "s99", "s27")
    if OPT.get("rot"):
        pre("s_mul_i32", sOK, sHEAD, OPT["rot"] * 16384)
        pre("s_mov_b32", sOV, sOK)
    else:
        pre("s_mov_b32", sOK, -16384 & 0xffffffff)
        pre("s_mov_b32", sOV, -16384 & 0xffffffff)
    pre("s_mov_b32", sTHR, f2u(2.0 ** 30))
    pre("v_bfe_u32", t1, L, 1, 2)
    pre("v_xor_b32", t1, t1, G_)
    pre("v_and_b32", t2, 1, L)
    pre("v_lshlrev_b32", t2, 4, t2)
    pre("v_lshl_add_u32", t2, t1, 5, t2)
    pre("v_add_u32", voffDO, "v215", t2)
    pre("v_lshrrev_b32", t1, 1, Q15)
    pre("v_xor_b32", t1, t1, G_)
    pre("v_lshlrev_b32", t1, 4, t1)
    pre("v_lshl_add_u32", t1, Q15, 7, t1)
    pre("s_add_u32", "s95", sXQ, XB)
    pre("v_add_u32", "v218", "s95", t1)
    pre("v_xor_b32", "v219", 64, "v218")
    pre("v_lshl_add_u32", voffSt, L, 4, sXQ)
    pre("v_and_b32", t1, 7, L)
    pre("v_lshlrev_b32", t1, 1, t1)
    pre("v_lshrrev_b32", t2, 3, Q15)
    pre("v_or_b32", t1, t1, t2)
    pre("v_and_b32", t2, 1, G_)
    pre("v_lshl_or_b32", t2, t2, 1, LH)
    pre("v_xor_b32", t1, t1, t2)
    pre("v_lshlrev_b32", t1, 4, t1)
    pre("v_lshl_add_u32", kbase, Q15, 9, t1)
    pre("v_lshl_add_u32", t1, G_, 2, RR)
    pre("v_and_b32", t2, 7, t1)
    pre("v_lshlrev_b32", t2, 5, t2)
    pre("v_lshl_add_u32", t1, t1, 9, t2)
    pre("v_lshlrev_b32", t2, 3, CC)
    pre("v_lshlrev_b32", t3, 4, LH)
    pre("v_xor_b32", t2, t2, t3)
    pre("v_add_u32", vbase, t1, t2)
    pre("v_lshl_or_b32", t1, LH, 1, "s93")
    pre("v_xor_b32", t1, t1, LC)
    if OPT.get("lin"): pre("v_mov_b32", t1, LC)
    pre("v_lshlrev_b32", t1, 4, t1)
    pre("v_lshl_add_u32", t1, LH, 9, t1)
    pre("v_add_u32", voffKV0, sM4K, t1)
    pre("v_lshl_add_u32", t1, G_, 2, RR)
    pre("v_bfe_u32", t2, t1, 1, 2)
    pre("v_lshlrev_b32", t2, 5, t2)
    pre("v_lshl_add_u32", t1, t1, 7, t2)
    pre("v_lshl_add_u32", dobase, CC, 3, t1)
    pre("v_and_b32", t1, 1, G_)
    pre("v_lshl_or_b32", t1, t1, 2, RR)
    pre("v_lshlrev_b32", t1, 5, t1)
    pre("v_lshl_add_u32", t1, CC, 3, t1)
    pre("v_lshl_add_u32", t2, G_, 3, RR)
    pre("v_lshl_add_u32", gq[0], t2, 8, t1)
    for j in range(1, 8): pre("v_xor_b32", gq[j], 32 * j, gq[0])
    for r in range(3): pre("v_cmp_eq_u32", sMASK[r], r + 1, CC)
    pre("v_cmp_eq_u32", sMASK[3], RR, G_)
    srd(sR, 26, sQB, PART, 2 * DOFF, sub=True)
    srd(sOut, 22, sQB, 128 * 896, 128 * 896)
    pre("s_mov_b32", "s4", "s24"); pre("s_and_b32", "s5", "s25", 0xffff); pre("s_mov_b32", "s6", 256); pre("s_mov_b32", "s7", 0x20000)
    pre("s_cmp_eq_u32", sW, 3)
    pre("s_cselect_b32", sHUGE3, 0x40000000, 0)
    pre("s_lshl_b32", "s96", sW, 7)
    pre("s_and_b32", "s3", sHEAD, 1)
    pre("s_lshl_b32", "s3", "s3", 6)
    pre("s_add_u32", "s96", "s96", "s3")
    pre("s_lshr_b32", "s3", sHEAD, 1)
    pre("s_mul_i32", "s3", "s3", 16 * 896)
    pre("s_add_u32", sOB, "s96", "s3")
    pre("s_lshr_b32", "s3", sHEAD, 2)
    pre("s_mul_i32", "s3", "s3", 28672)
    pre("s_add_u32", sRB, sM4K, "s3")
    pre("s_and_b32", "s3", sHEAD, 3)
    pre("s_lshl_b32", "s3", "s3", 10)
    pre("s_add_u32", sRB, sRB, "s3")
    pre("s_sub_u32", sRB, sRB, sXQ)
    pre("s_lshl_b32", sBIT, 1, sHEAD)
    pre("s_lshl_b32", sQ16, sQB, 4)
    pre("s_add_u32", "s26", "s26", FOFF)
    pre("s_addc_u32", "s27", "s27", 0)
    srd(sFL, 26, sQB, 4096, 4096)
    pre("v_lshlrev_b32", t1, 4, voffSt)
    pre("v_mov_b32", t2, 0)
    pre("s_lshl_b32", "s96", sHEAD, 2)
    pre("buffer_store_dword", t2, t1, sFL, "s96", mods="offen sc1", tag="st")
    pre("s_lshl_b32", "s3", "s2", 2)
    pre("s_add_u32", "s3", "s3", sW)
    pre("s_mul_i32", "s96", "s3", 13108)
    pre("s_lshr_b32", "s96", "s96", 16)
    pre("s_mul_i32", "s96", "s96", 5)
    pre("s_sub_u32", "s3", "s3", "s96")
    pre("s_sub_u32", sTHRP, 12, "s3")
    pre("s_mov_b32", sAT, sQ16)
    pre("s_mov_b32", sGO, 0)
    pre("s_mov_b32", sCNT, 13)
    pre("s_mov_b32", sDH, DOFF)
    ones = V(220, 4, "ones")
    for i in range(4): pre("v_mov_b32", ones[i], 0x3f803f80)

    ring = [0]
    abase = {}
    dsq = []

    def new_frag():
        f = A_(4 * (ring[0] % 16), 4, f"frag{ring[0]}"); ring[0] += 1
        return f

    def rebase(addr, off, g):
        cur = abase.get(addr[0].base, 0)
        want = off & 0x10000
        if want != cur:
            nv = addr[0].new()
            P.put(g - 1, I("v_xor_b32", nv, 0x10000, addr[0]))
            addr[0] = nv; abase[nv.base] = want
        return off & 0xffff

    def rd_tr(g, dst, addr, off, u, dual=False):
        if dual: a, imm = addr[off >> 16], off & 0xffff
        else: imm = rebase(addr, off, g); a = addr[0]
        P.put(g, I("ds_read_b64_tr_b16", dst, a, mods=f"offset:{imm}", meta=dict(unit=u, slot=slot(u))))

    def mf(D, A, B, C=None, k16=False):
        return P.mfma(I("v_mfma_f32_16x16x16_bf16" if k16 else "v_mfma_f32_16x16x32_bf16", D, A, B, D if C is None else C))

    ustart = {}

    def sync(u, g, dma_gaps=None, extra=()):
        tags = [("u", x) for x in (u + 1, u + 2)] + list(extra)
        P.put(g - 1, I("s_waitcnt", "vmcnt(?)", meta=dict(vm=tags, keep=True)))
        P.put(g, I("s_barrier"))
        if u == 0: return
        grp = []
        for x in (u + 6, u + 7):
            if x < NU: grp += dma_ops(x)
        gs = dma_gaps or [g + 3 + 6 * i for i in range(8)]
        for (sal, d), gg in zip(grp, gs):
            for i, x in enumerate(sal): P.put(gg - len(sal) + i, x)
            P.put(gg, d)

    def lin_touch(g, srd_, off):
        if not OPT.get("touch", 1): return
        P.put(g - 1, I("s_mov_b32", "s96", off)); P.put(g, touch("v23", srd_, "s96"))

    sumacc = [V(224 + 4 * qs, 4, f"sum{qs}") for qs in range(2)]
    pu = V(232, 16, "preunp")
    xraw = {}
    for k in range(14):
        for qs in range(2):
            xraw[k, qs] = V(XCB + 8 * k + 4 * qs, 4, f"xraw{k}_{qs}")
            g = P.g - 8
            if qs == 0 and k == 0: P.put(g - 1, I("s_waitcnt", "vmcnt(?)", meta=dict(vm=["x"])))
            P.put(g, I("ds_read_b128", xraw[k, qs], "v219" if k & 1 else "v218", mods=f"offset:{4096*(k>>1)+2048*qs}"))
            mf(sumacc[qs], ones, xraw[k, qs], 0 if k == 0 else None)
    grp = [x for u in range(NPRE, 8) for x in dma_ops(u)]
    for i, (sal, d) in enumerate(grp):
        gg = P.g + 2 + 3 * i
        for q, x in enumerate(sal): P.put(gg - len(sal) + q, x)
        P.put(gg, d)
    if OPT["stamps"] == 2:
        for gg in (0, 13, 26):
            P.raw.add(gg); estamp(gg)
    ops = []
    for qs in range(2):
        for i in range(4):
            ops += [I("v_lshlrev_b32", pu[8 * qs + 2 * i], 16, xraw[0, qs][i]), I("v_and_b32", pu[8 * qs + 2 * i + 1], 0xffff0000, xraw[0, qs][i])]
    P.spread(ops, 10, 26)
    g = P.g - 1
    P.raw.add(g)
    mean = [V(T0 + qs, 1, "mean") for qs in range(2)]
    mr = [st[0], st[1]]; dl = [st[2], st[3]]
    pk = V(T0 + 2, 1, "pk")
    P.put(g, I("s_waitcnt", "vmcnt(?)", meta=dict(vm=[("u", 0)], keep=True)))
    P.put(g, I("s_barrier"))
    g_first_reads = g
    estamp(g)
    if OPT["stamps"] == 2:
        for i in early: P.put(g, I("v_readfirstlane_b32", f"s{[20,21,22,23,24,25,78,79][i]}", f"v{248+i}"))
        stamp_n[0] = len(early)
        OPT["stamps"] = 0; OPT["_st"] = 1
    late = []
    for qs in range(2): late.append(I("v_mul_f32", mean[qs], f2u(1.0 / 448), sumacc[qs][0]))
    late.append(I("v_cvt_pk_bf16_f32", pk, mean[0], mean[1]))
    late.append(I("v_lshlrev_b32", mr[0], 16, pk))
    late.append(I("v_and_b32", mr[1], 0xffff0000, pk))
    for qs in range(2): late.append(I("v_sub_f32", dl[qs], mean[qs], mr[qs]))
    xc = {}
    for qs in range(2):
        xc[0, qs] = xraw[0, qs].new(f"xc0_{qs}")
        for i in range(8): late.append(I("v_sub_f32", pu[8 * qs + i], pu[8 * qs + i], mr[qs]))
        for i in range(4): late.append(I("v_cvt_pk_bf16_f32", xc[0, qs][i], pu[8 * qs + 2 * i], pu[8 * qs + 2 * i + 1]))

    def center(k):
        o = []
        for qs in range(2):
            xc[k, qs] = xraw[k, qs].new(f"xc{k}_{qs}")
            t = V(T0, 8, "ctmp")
            for i in range(4):
                o += [I("v_lshlrev_b32", t[2 * i], 16, xraw[k, qs][i]), I("v_and_b32", t[2 * i + 1], 0xffff0000, xraw[k, qs][i])]
            for i in range(8): o.append(I("v_sub_f32", t[i], t[i], mr[qs]))
            for i in range(4): o.append(I("v_cvt_pk_bf16_f32", xc[k, qs][i], t[2 * i], t[2 * i + 1]))
        return o

    gqa = [[x] for x in gq]
    clampg = lambda g: max(g, g_first_reads)

    stamp(P.g - 1)
    gacc = {(j, img, qs): V(GB + 16 * j + 8 * qs + 4 * img, 4, f"gacc{j}{img}{qs}") for j in range(7) for img in range(2) for qs in range(2)}
    gram = [A_(192 + 4 * qs, 4, f"gram{qs}") for qs in range(2)]
    for k in range(14):
        u = k
        g0 = ustart[u] = P.g
        nxt = center(k + 1) if k < 13 else []
        for qs in range(2): mf(gram[qs], xc[k, qs], xc[k, qs], 0 if k == 0 else None)
        for j in range(7):
            for img in range(2):
                f = new_frag()
                for e in range(2):
                    rd_tr(clampg(P.g - LEAD + e), f[2 * e:2 * e + 2], gqa[j], slot(u) * 16384 + img * 8192 + 4 * e * 256, u)
                for qs in range(2): mf(gacc[j, img, qs], f, xc[k, qs], 0 if k == 0 else None)
        if k == 0:
            for x in late: P.put(g_first_reads, x)
        if nxt: P.spread(nxt, g0, P.g - 2)
        if u % 2 == 0: sync(u, g0 + 3)
    P.put(ustart[3] + 24, touch(st[5], sWq))
    for i in range(2): lin_touch(ustart[5 + 2 * i] + 24, sWd, 65536 * i)
    for i in range(3): lin_touch(ustart[9 + 2 * i] + 24, (sK, sV, sK)[i], 65536 * (i // 2))
    o = []
    cq, cg, sd = [st[0].new("cq0"), st[1].new("cq1")], [st[2].new("cg0"), st[3].new("cg1")], [st[4], st[5].new("sd1")]
    for qs in range(2):
        t = V(T0, 8, "gtmp")
        for r in range(4): o.append(I("v_accvgpr_read_b32", t[r], gram[qs][r]))
        for r in range(3): o.append(I("v_cndmask_b32", t[0], t[0], t[r + 1], sMASK[r]))
        o.append(I("v_cndmask_b32", t[0], 0, t[0], sMASK[3]))
        for sw in ("v_permlane32_swap_b32", "v_permlane16_swap_b32"):
            o += [I("v_mov_b32", t[1], t[0]), I(sw, t[0], t[1]), I("v_add_f32", t[0], t[0], t[1])]
        o.append(I("v_mul_f32", t[1], dl[qs], dl[qs]))
        o.append(I("v_mul_f32", t[0], f2u(1.0 / 448), t[0]))
        o.append(I("v_sub_f32", t[0], t[0], t[1]))
        o.append(I("v_max_f32", t[0], 0, t[0]))
        rnd = lambda: [I("v_cvt_pk_bf16_f32", t[0], t[0], t[0]), I("v_lshlrev_b32", t[0], 16, t[0])]
        o += rnd()
        o.append(I("v_add_f32", t[0], f2u(1e-5), t[0]))
        o += rnd()
        o.append(I("v_sqrt_f32", t[0], t[0]))
        o += [I("v_cvt_pk_bf16_f32", t[0], t[0], t[0]), I("v_lshlrev_b32", sd[qs], 16, t[0])]
        o.append(I("v_rcp_f32", t[0], sd[qs]))
        o.append(I("v_mul_f32", cq[qs], f2u(LOG2E / 16), t[0]))
        o.append(I("v_mul_f32", cg[qs], f2u(-LOG2E), t[0]))
    stat_ops = o

    stamp(P.g - 1)
    qacc = {(dt, qs): A_(128 + 8 * dt + 4 * qs, 4, f"qacc{dt}_{qs}") for dt in range(16) for qs in range(2)}
    def q_unit(u, n):
        half, nn = n // 7, n % 7
        g0 = ustart[u] = P.g
        for ks in range(2):
            k = 2 * nn + ks
            for j in range(8):
                f = new_frag()
                for e in range(2):
                    rd_tr(P.g - LEAD + e, f[2 * e:2 * e + 2], gqa[j], slot(u) * 16384 + (32 * ks + 4 * e) * 256, u)
                for qs in range(2): mf(qacc[8 * half + j, qs], f, xc[k, qs], 0 if k == 0 else None)
        if u % 2 == 0: sync(u, g0 + 3)
    hh = {}
    o = []
    for j in range(7):
        for qs in range(2):
            ga, ua = gacc[j, 0, qs], gacc[j, 1, qs]
            for r in range(4): o.append(I("v_mul_f32", ga[r], cg[qs], ga[r]))
            for r in range(4): o.append(I("v_exp_f32", ga[r], ga[r]))
            for r in range(4): o.append(I("v_fma_f32", ga[r], ga[r], sd[qs], sd[qs]))
            for r in range(4): o.append(I("v_rcp_f32", ga[r], ga[r]))
            for r in range(4): o.append(I("v_mul_f32", ua[r], ga[r], ua[r]))
            if j % 2 == 0: hh[j // 2, qs] = ga.new(f"hh{j//2}_{qs}")
            h = hh[j // 2, qs]
            for i in range(2): o.append(I("v_cvt_pk_bf16_f32", h[2 * (j % 2) + i], ua[2 * i], ua[2 * i + 1]))
    gepi = o
    qf = {(ks, qs): A_(64 + 8 * ks + 4 * qs, 4, f"qf{ks}_{qs}") for ks in range(8) for qs in range(2)}

    def qepi(ks, qs):
        t = V(T0, 8, "qtmp")
        o = []
        for i in range(8): o.append(I("v_accvgpr_read_b32", t[i], qacc[2 * ks + i // 4, qs][i % 4]))
        for i in range(8): o.append(I("v_mul_f32", t[i], cq[qs], t[i]))
        for i in range(4): o.append(I("v_cvt_pk_bf16_f32", t[i], t[2 * i], t[2 * i + 1]))
        o += [I("v_permlane16_swap_b32", t[0], t[2]), I("v_permlane16_swap_b32", t[1], t[3])]
        for i in range(4): o.append(I("v_accvgpr_write_b32", qf[ks, qs][i], t[i]))
        return o
    qa = [x for ks in range(4) for qs in range(2) for x in qepi(ks, qs)]
    qb = [x for ks in range(4, 8) for qs in range(2) for x in qepi(ks, qs)]
    doa = [[V(32 + i, 1, f"do{i}")] for i in range(4)]
    adr_do = [I("v_xor_b32", doa[s][0], 32 * s, dobase) for s in range(4)]
    adr_kv = [I("v_xor_b32", voffKV[i], 64 * i, voffKV0) for i in range(4)]

    def do_unit(u, B, nks, acc, first, last_half=False):
        done = {}
        for T in range(4):
            for ks in range(nks):
                f = new_frag()
                k16 = last_half and ks == nks - 1
                for e in range(1 if k16 else 2):
                    rd_tr(P.g - LEAD + e, f[2 * e:2 * e + 2], doa[T], slot(u) * 16384 + (32 * ks + 16 * e) * 128, u)
                for qs in range(2):
                    c = 0 if (first and ks == 0) else None
                    if k16: mf(acc[T, qs], f[0:2], B[ks, qs][0:2], c, k16=True)
                    else: mf(acc[T, qs], f, B[ks, qs], c)
            done[T] = P.g - 1
        return done

    def do_epi(acc, p, soff, scale=None):
        o = []
        for qs in range(2):
            a, b = acc[2 * p, qs], acc[2 * p + 1, qs]
            if scale:
                for x in (a, b):
                    for r in range(4): o.append(I("v_mul_f32", x[r], scale[qs], x[r]))
            pkd = a.new("pkd")
            o += [I("v_cvt_pk_bf16_f32", pkd[0], a[0], a[1]), I("v_cvt_pk_bf16_f32", pkd[1], a[2], a[3]),
                  I("v_cvt_pk_bf16_f32", pkd[2], b[0], b[1]), I("v_cvt_pk_bf16_f32", pkd[3], b[2], b[3])]
            if qs == 0: o.append(I("s_mov_b32", sST, soff))
            o.append(None)
            o.append(I("buffer_store_dwordx4", pkd, voffSt, sP, sST, mods=f"offen offset:{(2*qs+p)*1024} sc1", tag="st"))
        return o

    def seq(ops, g0, per=1):
        g = g0; c = 0
        for x in ops:
            if x is None:
                g += 1; c = 0; continue
            P.put(g, x)
            if x.kind != "salu":
                c += 1
                if c >= per: g += 1; c = 0
        return g

    dfree = [GB + 16 * j + 4 * i for j in (1, 3, 5) for i in range(4)] + [GB + 16 * j + 8 * qs + 4 for j in (0, 2) for qs in range(2)]
    def dacc(j): return {(T, qs): V(dfree[8 * (j % 2) + 2 * T + qs], 4, f"dacc{j}_{T}{qs}") for T in range(4) for qs in range(2)}

    def d_unit(u, j):
        g0 = ustart[u] = P.g
        acc = dacc(j)
        done = do_unit(u, hh, 4, acc, True, last_half=True)
        for p in range(2): seq(do_epi(acc, p, DOFF + j * 4096), done[2 * p + 1] + 4)
        if u % 2 == 0: sync(u, g0 + 3)
    for u in range(14, 34):
        if u == 21: stamp(P.g - 1)
        (q_unit if units[u][0] == "Q" else d_unit)(u, units[u][1])
    uend = lambda u: ustart[u + 1] if u + 1 in ustart else P.g
    uD0 = units.index(("D", 0)); uQe = units.index(("Q", 13))
    for i in range(3): lin_touch(ustart[15 + 4 * i] + 24, (sV, sK, sV)[i], 65536 * ((i + 3) // 2))
    P.spread(adr_do, ustart[21] + 16, ustart[21] + 19)
    P.spread(adr_kv, ustart[27] + 20, ustart[27] + 28)
    P.fillv(stat_ops + gepi, ustart[13] + 5, ustart[uD0] - 2)
    ka = [[V(36 + 4 * h + i, 1, f"ka{h}{i}") for h in range(2)] for i in range(4)]
    va = [[V(44 + 8 * h + j, 1, f"va{h}{j}") for h in range(2)] for j in range(8)]
    adr = [I("v_xor_b32", ka[i][h], 64 * i + 0x10000 * h, kbase) for i in range(4) for h in range(2)]
    adr += [I("v_xor_b32", va[j][h], 32 * j + 0x10000 * h, vbase) for j in range(8) for h in range(2)]
    P.fillv(qa + adr, max(ustart[uD0] - 2, ustart[21] + 4), uend(uQe) + 4)
    P.fillv(qb, uend(uQe) + 4, P.g + 5)

    O = {(dt, qs): V(128 + 8 * dt + 4 * qs, 4, f"O{dt}_{qs}") for dt in range(16) for qs in range(2)}
    Sreg = lambda t, sub, qs: 64 + 16 * (t % 2) + 8 * sub + 4 * qs
    Preg = lambda t, qs: 96 + 8 * (t % 2) + 4 * qs
    negm = [V(112 + 4 * qs, 4, f"negm{qs}") for qs in range(2)]
    lsum = [V(120 + qs, 1, f"l{qs}") for qs in range(2)]
    S, Pv, ps = {}, {}, {}
    slotgap = lambda n: 4 * (n // 3) + (n % 3)

    def k_unit(u, t, rdgap):
        ustart[u] = P.g
        for sub in range(2):
            for qs in range(2): S[t, sub, qs] = V(Sreg(t, sub, qs), 4, f"S{t}_{sub}{qs}")
            for ks in range(8):
                f = new_frag()
                off = slot(u) * 16384 + 8192 * sub + 256 * (ks >> 2)
                P.put(rdgap(8 * sub + ks), I("ds_read_b128", f, ka[ks & 3][off >> 16], mods=f"offset:{off & 0xffff}", meta=dict(unit=u, slot=slot(u))))
                for qs in range(2):
                    c = None if ks else (0 if t == 0 else negm[qs])
                    mf(S[t, sub, qs], f, qf[ks, qs], c)

    def v_unit(u, t, rdgap):
        ustart[u] = P.g
        done = {}
        for dt in range(16):
            f = new_frag()
            for e in range(2):
                rd_tr(rdgap(2 * dt + e), f[2 * e:2 * e + 2], va[dt & 7], slot(u) * 16384 + 8192 * e + 256 * (dt >> 3), u, dual=True)
            for qs in range(2): mf(O[dt, qs], f, Pv[t, qs], 0 if t == 0 else None)
            done[dt] = P.g - 1
        return done

    def softmax_ops(t):
        for qs in range(2):
            Pv[t, qs] = V(Preg(t, qs), 4, f"P{t}_{qs}")
            ps[t, qs] = V(122 + qs, 1, f"ps{t}_{qs}")
        out = []
        n = 0
        for sub in range(2):
            for qs in range(2):
                prev = None
                for r in range(4):
                    e = V(T0 + n % 4, 1, f"e{t}_{n}"); n += 1
                    ex = I("v_exp_f32", e, S[t, sub, qs][r])
                    if sub == 0 and r == 0: ad = None
                    elif sub == 0 and r == 1: ad = I("v_add_f32", ps[t, qs], prev, e)
                    else: ad = I("v_add_f32", ps[t, qs], ps[t, qs], e)
                    cv = I("v_cvt_pk_bf16_f32", Pv[t, qs][2 * sub + r // 2], prev, e) if r % 2 else None
                    out.append((ex, ad, cv)); prev = e
        return out

    def check_ops(t, g, site):
        mx = V(T0 + 4, 1, "mx")
        P.put(g, I("v_max_f32", mx, ps[t, 0], ps[t, 1]))
        P.put(g + 1, I("v_cmp_nge_f32", "vcc", sTHR, mx))
        P.put(g + 3, I("s_cbranch_vccnz", f"L_slow_{site}"))
        P.put(g + 3, I(f"L_back_{site}:"))
        if (site, t % 2) not in slow_sites: slow_sites.append((site, t % 2))
        for qs in range(2): P.put(g + 3 + qs, I("v_add_f32", lsum[qs], lsum[qs], ps[t, qs]))

    vcode = V(8, 1, "vcode")
    P.put(P.g + 40, I("v_lshrrev_b32", vcode, 1, "v23"))
    P.put(P.g + 41, I("v_add_u32", vcode, "L_tail-L_pc0", vcode))
    P.put(P.g + 42, I("v_min_u32", vcode, "L_k1_last-L_pc0", vcode))
    voffR = [V(9 + m, 1, f"voffR{m}") for m in range(2)]
    voffA, vbit, vpoll, voffF = V(13, 1, "voffA"), V(14, 1, "vbit"), V(15, 1, "vpoll"), V(12, 1, "voffF")
    sel = [A_(128, 4, "sel0"), A_(132, 4, "sel1")]
    dld = [A_(136 + 4 * i, 4, f"dld{i}") for i in range(4)]
    dsum = [A_(152 + 4 * i, 4, f"dsum{i}") for i in range(4)]
    ra, rb, rc, rd_ = [V(124 + i, 1, f"r{i}") for i in range(4)]
    gs0 = P.g + 66
    rs_ops = [I("v_add_u32", voffR[0], sRB, voffSt), I("v_add_u32", voffR[1], 16384, voffR[0]), I("v_add_u32", voffR[1], sHUGE3, voffR[1]),
              I("v_lshlrev_b32", voffA, 4, voffSt), I("v_mov_b32", vbit, sBIT),
              I("v_subrev_u32", voffF, sXQ, voffSt), I("v_lshrrev_b32", voffF, 2, voffF),
              I("v_bfe_u32", ra, voffF, 5, 1), I("v_bfe_u32", rb, voffF, 3, 1), I("v_lshl_add_u32", ra, ra, 1, rb),
              I("v_bfe_u32", rb, voffF, 4, 1), I("v_lshlrev_b32", rb, 1, rb), I("v_lshrrev_b32", rc, 6, voffF), I("v_xor_b32", rb, rb, rc),
              I("v_lshl_add_u32", ra, rb, 2, ra),
              I("v_and_b32", rb, 4, voffF), I("v_lshlrev_b32", rb, 2, rb), I("v_mov_b32", rc, 0x3f80), I("v_lshlrev_b32", rb, rb, rc)]
    for i in range(0, 8, 2):
        rs_ops += [I("v_cmp_eq_u32", sMASK[0], i, ra), I("v_cmp_eq_u32", sMASK[1], i + 1, ra),
                   I("v_accvgpr_write_b32", dsum[i // 2][0], 0, meta=dict(init=True)), I("v_accvgpr_write_b32", dsum[i // 2][1], 0, meta=dict(init=True)),
                   I("v_cndmask_b32", rc, 0, rb, sMASK[0]), I("v_cndmask_b32", rd_, 0, rb, sMASK[1]),
                   I("v_accvgpr_write_b32", sel[i // 4][i % 4], rc), I("v_accvgpr_write_b32", sel[i // 4][i % 4 + 1], rd_),
                   I("v_accvgpr_write_b32", dsum[i // 2][2], 0, meta=dict(init=True)), I("v_accvgpr_write_b32", dsum[i // 2][3], 0, meta=dict(init=True))]
    def poll(g, word):
        P.put(g - 2, I("s_cmp_lt_u32", sCNT, sTHRP))
        P.put(g - 1, I("s_cselect_b32", sTMP[2], sQ16, OOB))
        P.put(g, I("buffer_load_dword", vpoll, "off", sDBG, sTMP[2], mods="sc1", tag="poll"))
    poll(P.g + 10, 0)
    stamp(P.g - 1)
    g0 = P.g
    k_unit(34, 0, lambda n: g0 + 2 * n - LEAD)
    sync(34, g0 + 3)
    gk0 = P.g
    d_unit(35, 6)
    o = []
    for qs in range(2):
        t = V(T0 + 4 + 2 * qs, 2, "mtmp")
        a, b = S[0, 0, qs], S[0, 1, qs]
        o += [I("v_max3_f32", t[0], a[0], a[1], a[2]), I("v_max3_f32", t[0], t[0], a[3], b[0]), I("v_max3_f32", t[0], t[0], b[1], b[2]), I("v_max_f32", t[0], t[0], b[3])]
        for sw in ("v_permlane32_swap_b32", "v_permlane16_swap_b32"):
            o += [I("v_mov_b32", t[1], t[0]), I(sw, t[0], t[1]), I("v_max_f32", t[0], t[0], t[1])]
        for r in range(4): o.append(I("v_sub_f32", negm[qs][r], 0, t[0]))
        o.append(I("v_mov_b32", lsum[qs], 0))
    for sub in range(2):
        for qs in range(2):
            for r in range(4): o.append(I("v_add_f32", S[0, sub, qs][r], S[0, sub, qs][r], negm[qs][0]))
    P.spread(o[:30], gk0 + 3, P.g - 2)
    P.spread(o[30:], P.g - 6, P.g + 4)
    sm = {0: softmax_ops(0)}
    gi0 = P.g
    for i, (ex, ad, cv) in enumerate(sm[0]):
        g = gi0 + 1 + (i * 23) // 16
        P.put(g, ex)
        if ad: P.put(g + 1, ad)
        if cv: P.put(g + 1, cv)
    P.fillv(rs_ops[:7], gs0 + 30, gs0 + 62)
    rs_late = (rs_ops[7:], gs0 + 62, gs0 + 180)
    loop_first, loop_n = 3, 14
    loop_g = []
    ROT = 8
    for t in range(63):
        uk, uv = 36 + 2 * t, 37 + 2 * t
        g0 = P.g
        inloop = loop_first <= t < loop_first + 4 * loop_n
        if inloop and (t - loop_first) % 4 == 0:
            loop_g.append(g0)
            P.put(g0 - 1, I("L_loop:", meta=dict(last=True)))
        sg = lambda n: g0 + slotgap(n - ROT + 48) - 64
        k_unit(uk, t + 1, lambda n: sg(n))
        site = f"w{(t - loop_first) % 4}" if inloop else f"p{t}"
        check_ops(t, g0 + 25, site)
        v_unit(uv, t, lambda n: sg(16 + n))
        sync(uk, g0 + 5, dma_gaps=[g0 + x for x in (10, 14, 18, 22, 34, 42, 50, 58)], extra=["st"] if t == loop_first + 1 else [])
        pos = (t - loop_first) % 4
        tl = loop_first + 4 * loop_n
        if pos == 1 and inloop:
            P.put(g0 + 6, I("buffer_atomic_or", vbit, voffA, sDBG, sAT, mods="offen", tag="flag"))
            P.put(g0 + 12, I("s_mov_b32", sAT, OOB))
        if pos == 0 and t < tl: poll(g0 + 13, 0)
        if pos == 1 and 1 <= t <= tl + 1:
            for hh_ in range(2):
                for i in range(4): mf(dsum[i], sel[i % 2], dld[2 * hh_ + i // 2])
        if pos == 2 and t < tl:
            P.put(g0 + 6, I("v_readfirstlane_b32", "s96", vpoll))
            P.put(g0 + 10, I("s_cmp_eq_u32", "s96", 0xffff))
            P.put(g0 + 11, I("s_cselect_b32", sGO, 2 * PLANE, sGO))
            P.put(g0 + 12, I("s_cselect_b32", sTHRP, 0, sTHRP))
            P.put(g0 + 13, I("s_cmp_lg_u32", sGO, 0))
            P.put(g0 + 14, I("s_cselect_b32", sTMP[0], sDH, OOB))
            P.put(g0 + 15, I("s_add_u32", sDH, sDH, sGO))
            P.put(g0 + 16, I("s_add_u32", sTMP[1], sTMP[0], PLANE))
            for m in range(4): dld[m] = dld[m].new()
            for i, gg in enumerate((27, 30, 37, 38)):
                P.put(g0 + gg, I("buffer_load_dwordx4", dld[i], voffR[i % 2], sR, sTMP[i // 2], mods="offen sc1", tag="dld"))
        if t == tl + 2:
            P.put(g0 + 36, I("s_cmp_lt_u32", sDH, DOFF + 16 * PLANE))
            P.put(g0 + 37, I("s_cbranch_scc1", "L_dlate"))
            P.put(g0 + 37, I("L_dback:"))
        if OPT.get("touch", 1) and t % 2 == 0:
            if t < 52:
                P.put(g0 + 60, I("s_add_u32", "s96", sOK, (8 if t % 4 == 0 else 6) * 16384)); P.put(g0 + 61, touch("v23", sK if t % 4 == 0 else sV, "s96"))
            elif inloop:
                P.put(g0 + 60, I("s_add_u32", "s96", sOK, (8 if t % 4 == 0 else 6) * 16384)); P.put(g0 + 61, touch("v23", sK if t % 4 == 0 else sV, "s96"))
        if inloop and (t - loop_first) % 4 == 0:
            P.put(g0 + 59, I("s_and_b32", "s96", sCNT, 3)); P.put(g0 + 60, I("s_lshl_b32", "s96", "s96", 16)); P.put(g0 + 61, touch("v23", sWo, "s96"))
        if (inloop or t == loop_first - 2) and (t - loop_first) % 4 == 2:
            P.put(g0 + 61, I("global_load_dword", "v22", vcode, "s[90:91]", tag="touch", meta=dict(touch=True)))
        sm[t + 1] = softmax_ops(t + 1)
        for i, (ex, ad, cv) in enumerate(sm[t + 1]):
            if t + 1 < 63:
                g = g0 + 27 + 4 * i + (4 if i == 0 else 0) * 0
                if i == 0: g = g0 + 30
            else:
                g = g0 + 30 + 2 * i
            P.put(g, ex)
            if ad: P.put(g + 1, ad)
            if cv: P.put(g + (2 if t + 1 < 63 else 1), cv)
        if inloop and (t - loop_first) % 4 == 3:
            P.put(P.g - 2, I("s_sub_u32", sCNT, sCNT, 1))
            P.put(P.g - 1, I("s_cbranch_scc0", "L_loop", meta=dict(last=True)))
        if t == loop_first - 1:
            assert loop_n == 14
            stamp(g0 + 62)
        if t == loop_first + 4 * loop_n: stamp(g0 + 1)
    P.fillv(*rs_late)
    g0 = P.g
    gl = g0 - 1
    P.raw.add(gl)
    mx = V(T0 + 4, 1, "mx")
    tail = [I("v_max_f32", mx, ps[63, 0], ps[63, 1]), I("v_cmp_nge_f32", "vcc", sTHR, mx), I("s_cbranch_vccnz", "L_slow_last"), I("L_back_last:")]
    slow_sites.append(("last", 1))
    done = v_unit(162, 63, lambda n: g0 + n - LEAD)
    for x in tail: P.put(gl, x)
    sync(162, g0 + 3)
    stamp(P.g - 1)
    o = []
    rl = [st[0].new("rl0"), st[1].new("rl1")]
    lo = []
    for qs in range(2):
        t = V(T0 + 2 * qs, 2, "ltmp")
        lo.append(I("v_add_f32", t[0], lsum[qs], ps[63, qs]))
        for sw in ("v_permlane32_swap_b32", "v_permlane16_swap_b32"):
            lo += [I("v_mov_b32", t[1], t[0]), I(sw, t[0], t[1]), I("v_add_f32", t[0], t[0], t[1])]
        lo.append(I("v_rcp_f32", rl[qs], t[0]))
    of = {}
    for ks in range(8):
        o = []
        for qs in range(2):
            a, b = O[2 * ks, qs], O[2 * ks + 1, qs]
            of[ks, qs] = a.new(f"of{ks}_{qs}")
            x = of[ks, qs]
            o += [I("v_cvt_pk_bf16_f32", x[0], a[0], a[1]), I("v_cvt_pk_bf16_f32", x[1], a[2], a[3]),
                  I("v_cvt_pk_bf16_f32", x[2], b[0], b[1]), I("v_cvt_pk_bf16_f32", x[3], b[2], b[3])]
        gs = max(done[2 * ks + 1] + 4, g0 + 6 + 6 * ks)
        P.spread(o, gs, gs + 6)
    P.spread(lo, g0, g0 + 7)
    for j in range(7):
        acc = {(T, qs): V(64 + 32 * (j % 2) + 8 * T + 4 * qs, 4, f"oacc{j}_{T}{qs}") for T in range(4) for qs in range(2)}
        for half in range(2):
            u = 163 + 2 * j + half
            g0 = ustart[u] = P.g
            done = do_unit(u, {(ks, qs): of[4 * half + ks, qs] for ks in range(4) for qs in range(2)}, 4, acc, half == 0)
            if u % 2 == 0: sync(u, g0 + 3)
        gn = seq(do_epi(acc, 0, j * 4096, rl), done[1] + 4)
        seq(do_epi(acc, 1, j * 4096, rl), max(gn, done[3] + 4))
    gend = max(P.fill) + 1
    gv = V(36, 16, "gate"); xr = V(52, 8, "xr"); voffO = [V(60, 1, "voffO"), V(61, 1, "voffO1")]
    t = V(T0, 8, "gt")
    o = [I("v_bfe_u32", t[1], voffF, 2, 4), I("v_mul_u32_u24", t[1], 896, t[1]), I("v_lshrrev_b32", t[2], 6, voffF),
         I("v_lshl_add_u32", t[1], t[2], 4, t[1]), I("v_add_u32", voffO[0], sOB, t[1]), I("v_add_u32", voffO[1], sHUGE3, voffO[0])]
    def rnd4(x, tmp):
        r = []
        for i in range(2):
            r += [I("v_cvt_pk_bf16_f32", tmp[i], x[2 * i], x[2 * i + 1])]
        for i in range(2):
            r += [I("v_lshlrev_b32", x[2 * i], 16, tmp[i]), I("v_and_b32", x[2 * i + 1], 0xffff0000, tmp[i])]
        return r
    for m in range(4):
        x = gv[4 * m:4 * m + 4]; t = V(T0, 8, "gt")
        for i in range(4): o.append(I("v_accvgpr_read_b32", x[i], dsum[m][i]))
        o += rnd4(x, t)
        for i in range(4): o.append(I("v_mul_f32", t[i], f2u(-LOG2E), x[i]))
        for i in range(4): o.append(I("v_exp_f32", t[i], t[i]))
        for i in range(4): o.append(I("v_add_f32", t[i], 1.0, t[i]))
        for i in range(4): o.append(I("v_rcp_f32", t[i], t[i]))
        for i in range(4): o.append(I("v_mul_f32", x[i], x[i], t[i]))
        o += rnd4(x, t)
    P.fillv(o, ustart[163] + 24, ustart[175])
    for m in range(2):
        P.put(ustart[168] + 40 + 6 * m, I("buffer_load_dwordx4", xr[4 * m:4 * m + 4], voffO[m], sX, 0, mods=f"offen offset:{512*m}", tag="xr"))
    sDONE, sAV, sH8 = "s72", "s73", "s77"
    NS = OPT.get("nslot", 12)
    sreg = [64 + 8 * i for i in range(8)] + [168 + 8 * i for i in range(11)]
    slots = []
    P.put(ustart[168] + 20, I("s_lshl_b32", sH8, sHEAD, 8))
    P.put(ustart[171] + 27, I("s_mov_b32", sDONE, 0))
    if NS:
        for rnd_, (gp, ga, gb, ns) in enumerate(((ustart[170] + 1, ustart[171] + 28, ustart[174] + 16, NS // 2), (ustart[173] + 20, ustart[174] + 16, P.g - 1, NS - NS // 2))):
            vp = vpoll.new()
            P.put(gp, I("buffer_load_dword", vp, voffF, sFL, sH8, mods="offen sc1", tag=("poll", rnd_)))
            P.put(ga, I("s_waitcnt", "vmcnt(?)", meta=dict(vm=[("poll", rnd_)])))
            P.put(ga, I("v_cmp_ne_u32", "vcc", 0, vp))
            P.put(ga + 2, I("s_andn2_b32", sAV, "vcc_lo", sDONE))
            P.put(ga + 3, I("s_and_b32", sAV, sAV, 0xffff))
            step = (gb - ga - 4) // ns
            assert step >= 8
            for i in range(ns):
                g = ga + 4 + step * i
                P.put(g, I("s_ff1_i32_b32", "s96", sAV))
                P.put(g + 1, I("s_mul_i32", "s74", "s96", PLANE))
                P.put(g + 2, I("s_bitset1_b32", sDONE, "s96"))
                P.put(g + 3, I("s_cmp_lg_u32", sAV, 0))
                P.put(g + 4, I("s_cselect_b32", "s74", "s74", OOB))
                P.put(g + 5, I("s_bitset0_b32", sAV, "s96"))
                sv = A_(sreg[len(slots)], 8, f"slot{len(slots)}"); slots.append(sv)
                for m in range(2):
                    P.put(g + 5 + 2 * m, I("buffer_load_dwordx4", sv[4 * m:4 * m + 4], voffR[m], sR, "s74", mods="offen sc1", tag="slot"))
    stamp(gend)

    lin = P.linear()
    out = []; held = []
    for ins in lin:
        if ins.kind == "mfma":
            held.sort(key=lambda x: x.kind == "label")
            out += held; held = []
        if ins.meta.get("last"): held.append(ins)
        else: out.append(ins)
    lin = out + held
    lin = insert_lgkm(lin, OPT.get('minage', 5))
    lin = resolve_vm(lin)
    check_values(lin)
    lin, probs = check_hazards(lin, fix=True)
    check_lds(lin)
    lastw = None
    for ins in lin:
        if ins.gap >= 0 and ("scc", 0) in ins.rd:
            assert lastw.op.startswith("s_cmp") or lastw.text.startswith(f"s_sub_u32 {sCNT}"), (lastw.text, ins.text)
        if ("scc", 0) in ins.wr: lastw = ins
    cost = gap_cost(lin)
    marks = [("sum", 0), ("G", ustart[0]), ("Q", ustart[14]), ("D", ustart[28]), ("K0", ustart[34]), ("it2", ustart[40]), ("it3", ustart[42]), ("V63", ustart[162]), ("O", ustart[163]), ("end", len(P.m))]
    for (n, a), (_, b) in zip(marks, marks[1:]):
        print(f"  model {n}: gaps {b-a} cycles {sum(cost.get(g, 0) for g in range(a, b))}", file=sys.stderr)
    print(f"  nops inserted: {len(probs)}", file=sys.stderr)
    for p in probs[:400]:
        if OPT.get("shownops"): print("   ", p, file=sys.stderr)

    idx = [i for i, x in enumerate(lin) if x.text == "L_loop:"]
    ends = [i for i, x in enumerate(lin) if x.text == "s_cbranch_scc0 L_loop"]
    assert len(idx) == len(ends) == loop_n
    body = [x.text for x in lin[idx[0]:ends[0] + 1]]
    for a, b in zip(idx[1:], ends[1:]):
        other = [x.text for x in lin[a:b + 1]]
        for q, (x, y) in enumerate(zip(body, other)):
            if x != y and x.startswith("s_waitcnt vmcnt(") and y.startswith("s_waitcnt vmcnt("):
                body[q] = other[q] = min(x, y, key=lambda z: int(z[16:-1]))
        if other != body:
            for q, (x, y) in enumerate(zip(body, other)):
                if x != y: raise RuntimeError(f"loop not periodic at {q}: {x} | {y}")
            raise RuntimeError("loop length differs")
    for a, b in zip(ends, idx[1:]): assert b == a + 1
    q = ends[0] - 1
    while not lin[q].text.startswith(f"s_sub_u32 {sCNT}"):
        assert ("scc", 0) not in lin[q].wr, lin[q].text
        q -= 1
    if OPT.get("novm"): body = [x for x in body if "vmcnt" not in x]
    if OPT.get("nobar"): body = [x for x in body if "s_barrier" not in x]
    if OPT.get("nodma"): body = [x for x in body if " lds" not in x]
    if OPT.get("nolgkm"): body = [x for x in body if "lgkmcnt" not in x]
    if OPT.get("novalu"): body = [x for x in body if not (x.startswith("v_") and not x.startswith("v_mfma") and not x.startswith("v_cmp"))]
    if OPT.get("notouch"): body = [x for x in body if "v22" not in x]
    if OPT.get("nods"): body = [x for x in body if not x.startswith("ds_read")]
    if OPT.get("notr"): body = [x for x in body if not x.startswith("ds_read_b64")]
    if OPT.get("nob128"): body = [x for x in body if not x.startswith("ds_read_b128")]
    txt = [x.text for x in lin[:idx[0]]] + [".p2align 3"] * 0 + body + ["L_tail:"] + [x.text for x in lin[ends[-1] + 1:]]
    if OPT.get("all_nobar"): txt = [x for x in txt if "s_barrier" not in x]
    if OPT.get("all_novm"): txt = [x for x in txt if "vmcnt" not in x]
    if OPT.get("all_nolgkm"): txt = txt[:200] + [x for x in txt[200:] if "lgkmcnt" not in x]
    if OPT.get("all_nodma"): txt = [x for x in txt if " lds" not in x]
    if OPT.get("all_nods"): txt = [x for x in txt if not x.startswith("ds_read")]
    hreg = [8 * i for i in range(16)]
    acc4 = [f"v[{64+4*i}:{67+4*i}]" for i in range(4)]
    def fold(base, first=False):
        return [f"v_mfma_f32_16x16x32_bf16 {acc4[i]}, {sel[i % 2]}, a[{base+4*(i//2)}:{base+4*(i//2)+3}], {0 if first else acc4[i]}" for i in range(4)]
    fin = [f"s_lshl_b32 s74, {sHEAD}, 2", f"s_and_b32 {sDONE}, {sDONE}, 0xffff", "s_waitcnt vmcnt(0)", "s_barrier",
           f"buffer_store_dword {vbit}, {voffA}, {sFL}, s74 offen sc1",
           f"buffer_load_dword {vpoll}, {voffF}, {sFL}, {sH8} offen sc1"]
    if OPT["stamps"]:
        fin.append(f"s_memtime s[{STS[stamp_n[0]]}:{STS[stamp_n[0]]+1}]"); stamp_n[0] += 1
    if slots:
        for i, sv in enumerate(slots): fin += fold(sv.base, i == 0)
    else:
        fin += [f"v_mov_b32 v{64+i}, 0" for i in range(16)]
    fin += ["s_mov_b32 s75, 0", "s_mov_b32 s76, 0", "s_branch L_got", "L_poll:",
            f"buffer_load_dword {vpoll}, {voffF}, {sFL}, {sH8} offen sc1", "L_got:", "s_waitcnt vmcnt(0)",
            f"v_cmp_ne_u32 vcc, 0, {vpoll}", f"s_mov_b32 {sAV}, s75", "s_nop 3", f"s_andn2_b32 s75, vcc_lo, {sDONE}", "s_and_b32 s75, s75, 0xffff", f"s_or_b32 {sDONE}, {sDONE}, s75"]
    for h in range(16):
        fin += [f"s_bitcmp1_b32 s75, {h}", f"s_cbranch_scc0 L_skip{h}", f"s_mov_b32 s96, {h*PLANE}"]
        fin += [f"buffer_load_dwordx4 a[{hreg[h]+4*m}:{hreg[h]+4*m+3}], {voffR[m]}, {sR}, s96 offen sc1" for m in range(2)]
        fin.append(f"L_skip{h}:")
    fin += ["L_fold:"]
    for h in range(16):
        fin += [f"s_bitcmp1_b32 {sAV}, {h}", f"s_cbranch_scc0 L_skf{h}"] + fold(hreg[h]) + [f"L_skf{h}:"]
    fin += [f"s_cmp_eq_u32 {sDONE}, 0xffff", "s_cbranch_scc1 L_all", "s_sleep 1", "s_add_u32 s76, s76, 1", "s_cmp_lt_u32 s76, 0x40000", "s_cbranch_scc1 L_poll", "s_branch L_end",
            "L_all:", "s_cmp_eq_u32 s75, 0", "s_cbranch_scc1 L_fini", f"s_mov_b32 {sAV}, s75", "s_mov_b32 s75, 0", "s_waitcnt vmcnt(0)", "s_branch L_fold", "L_fini:", "s_nop 7"]
    if OPT["stamps"]:
        fin.append(f"s_memtime s[{STS[stamp_n[0]]}:{STS[stamp_n[0]]+1}]"); stamp_n[0] += 1
    F = []
    for m in range(2):
        pk_ = V(96 + 4 * m, 4)
        for hf in range(2):
            x = V(64 + 8 * m + 4 * hf, 4); t = V(80 + 8 * m + 4 * hf, 4)
            F += rnd4(x, t)
            for i in range(4): F.append(I("v_mul_f32", x[i], x[i], gv[8 * m + 4 * hf + i]))
            F += rnd4(x, t)
            for i in range(2):
                F += [I("v_lshlrev_b32", t[2 * i], 16, xr[4 * m + 2 * hf + i]), I("v_and_b32", t[2 * i + 1], 0xffff0000, xr[4 * m + 2 * hf + i])]
            for i in range(4): F.append(I("v_add_f32", x[i], x[i], t[i]))
            for i in range(2): F.append(I("v_cvt_pk_bf16_f32", pk_[2 * hf + i], x[2 * i], x[2 * i + 1]))
        F.append(I("buffer_store_dwordx4", pk_, voffO[m], sOut, 0, mods=f"offen offset:{512*m}"))
    for x in F: x.gap = 0
    F, _ = check_hazards(F, fix=True)
    txt += fin + [x.text for x in F]
    if OPT.get("nostore"): txt = [x for x in txt if not x.startswith("buffer_store")]
    if OPT.get("sc1"): txt = [x + " sc1" if x.startswith("buffer_store") else x for x in txt]
    if OPT.get("nt"): txt = [x + " nt" if x.startswith("buffer_store") else x for x in txt]
    if OPT["stamps"] or OPT.get("_st"):
        n = stamp_n[0]
        txt += ["s_waitcnt vmcnt(0)", f"s_memtime s[{STS[n]}:{STS[n]+1}]", "s_memrealtime s[26:27]", "s_waitcnt lgkmcnt(0)"]
        txt += ["s_add_u32 s28, s98, 0x8000000", "s_addc_u32 s29, s99, 0", "s_and_b32 s29, s29, 0xffff", "s_mov_b32 s30, 0x100000", "s_mov_b32 s31, 0x20000"]
        txt += ["s_lshl_b32 s3, s2, 2", f"s_add_u32 s3, s3, {sW}", "s_lshl_b32 s3, s3, 6", "v_mov_b32 v1, s3"]
        for i in range(n + 1):
            txt += [f"v_mov_b32 v2, s{([20,21,22,23,24,25,78,79][i] if (OPT.get('_st') and i < n) else STS[i])}", f"buffer_store_dword v2, v1, s[28:31], 0 offen offset:{4*i}"]
        txt += ["v_mov_b32 v2, s26", "buffer_store_dword v2, v1, s[28:31], 0 offen offset:60"]
        txt += ["v_mov_b32 v2, s100", "buffer_store_dword v2, v1, s[28:31], 0 offen offset:56", "v_mov_b32 v2, s101", "buffer_store_dword v2, v1, s[28:31], 0 offen offset:52"]
        txt = ["s_memtime s[98:99]", "s_memrealtime s[96:97]", "s_waitcnt lgkmcnt(0)", "s_mov_b32 s100, s98", "s_mov_b32 s101, s96"] + txt
    txt += ["L_end:", "s_endpgm"]
    for site, par in slow_sites:
        txt += [f"L_slow_{site}:", f"s_call_b64 {sRET}, L_rescale{par}", f"s_branch L_back_{site}"]
    for par in range(2):
        r = [f"L_rescale{par}:", "s_nop 15"]
        t0, t1_, dlt, fac = f"v{T0}", f"v{T0+1}", f"v{T0+2}", f"v{T0+3}"
        for qs in range(2):
            a, b = Sreg(par, 0, qs), Sreg(par, 1, qs)
            cur = [a + i for i in range(4)] + [b + i for i in range(4)]
            nx = [Sreg(1 - par, s, qs) + i for s in range(2) for i in range(4)]
            r += [f"v_max3_f32 {dlt}, v{cur[0]}, v{cur[1]}, v{cur[2]}", f"v_max3_f32 {dlt}, {dlt}, v{cur[3]}, v{cur[4]}",
                  f"v_max3_f32 {dlt}, {dlt}, v{cur[5]}, v{cur[6]}", f"v_max3_f32 {dlt}, {dlt}, v{cur[7]}, 0"]
            for sw in ("v_permlane32_swap_b32", "v_permlane16_swap_b32"):
                r += [f"v_mov_b32 {t0}, {dlt}", "s_nop 1", f"{sw} {dlt}, {t0}", "s_nop 1", f"v_max_f32 {dlt}, {dlt}, {t0}"]
            r += [f"v_exp_f32_e64 {fac}, -{dlt}", "s_nop 0"]
            for x in cur + nx + [negm[qs].base + i for i in range(4)]: r.append(f"v_sub_f32 v{x}, v{x}, {dlt}")
            r.append(f"v_mul_f32 v{lsum[qs].base}, v{lsum[qs].base}, {fac}")
            for dt in range(16):
                for i in range(4): r.append(f"v_mul_f32 v{O[dt, qs].base + i}, v{O[dt, qs].base + i}, {fac}")
            for i in range(4):
                r += [f"v_exp_f32 {t0}, v{cur[2*i]}", f"v_exp_f32 {t1_}, v{cur[2*i+1]}", "s_nop 0"]
                r.append(f"v_cvt_pk_bf16_f32 v{Preg(par, qs) + i}, {t0}, {t1_}")
                r.append(f"v_add_f32 {t0}, {t0}, {t1_}")
                r.append(f"v_add_f32 v{122+qs}, v{122+qs}, {t0}" if i else f"v_mov_b32 v{122+qs}, {t0}")
        r += ["s_nop 3", f"s_setpc_b64 {sRET}"]
        txt += r
    txt += ["L_dlate:", "s_mov_b32 s76, 0", "L_dpoll:", f"buffer_load_dword {vpoll}, off, {sDBG}, {sQ16} sc1", "s_waitcnt vmcnt(0)",
            f"v_readfirstlane_b32 s96, {vpoll}", "s_nop 3", "s_cmp_eq_u32 s96, 0xffff", "s_cbranch_scc1 L_dgo", "s_sleep 8",
            "s_add_u32 s76, s76, 1", "s_cmp_lt_u32 s76, 0x40000", "s_cbranch_scc1 L_dpoll", "s_branch L_dback", "L_dgo:",
            f"s_add_u32 s96, {sDH}, {PLANE}"]
    txt += [f"buffer_load_dwordx4 {dld[i]}, {voffR[i % 2]}, {sR}, {(sDH, 's96')[i // 2]} offen sc1" for i in range(4)]
    txt += ["s_waitcnt vmcnt(0)"]
    txt += [f"v_mfma_f32_16x16x32_bf16 {dsum[i]}, {sel[i % 2]}, {dld[2 * hh_ + i // 2]}, {dsum[i]}" for hh_ in range(2) for i in range(4)]
    txt += [f"s_add_u32 {sDH}, {sDH}, {2*PLANE}", f"s_cmp_lt_u32 {sDH}, {DOFF+16*PLANE}", "s_cbranch_scc1 L_dgo", "s_nop 7", "s_branch L_dback"]
    txt += ["L_k1_last:", "s_endpgm"]
    return txt


def k2():
    t = []
    A = t.append
    A("s_load_dwordx2 s[4:5], s[0:1], 0")
    A("s_load_dwordx2 s[6:7], s[0:1], 72")
    A("s_load_dwordx2 s[8:9], s[0:1], 88")
    A("s_cmp_ge_u32 s2, 256")
    A("s_cbranch_scc1 L2_end")
    A("v_lshrrev_b32 v1, 6, v0")
    A("v_and_b32 v2, 63, v0")
    A("v_readfirstlane_b32 s3, v1")
    A("s_mul_i32 s10, s2, 7")
    A("s_nop 2")
    A("s_add_u32 s3, s3, s10")
    A("s_lshl_b32 s10, s3, 10")
    A("v_lshl_add_u32 v3, v2, 4, s10")
    A("s_waitcnt lgkmcnt(0)")
    A("s_mov_b32 s12, s8"); A("s_and_b32 s13, s9, 0xffff"); A(f"s_mov_b32 s14, {2*DOFF}"); A("s_mov_b32 s15, 0x20000")
    for h in range(32):
        hh = (h % 2) * 16 + h // 2
        A(f"s_mov_b32 s{30+h}, {hh*PLANE}")
        A(f"buffer_load_dwordx4 v[{32+4*h}:{35+4*h}], v3, s[12:15], s{30+h} offen")
    A("s_mov_b32 s16, s4"); A("s_and_b32 s17, s5, 0xffff"); A(f"s_mov_b32 s18, {2048*896}"); A("s_mov_b32 s19, 0x20000")
    A("s_mov_b32 s20, s6"); A("s_and_b32 s21, s7, 0xffff"); A(f"s_mov_b32 s22, {2048*896}"); A("s_mov_b32 s23, 0x20000")
    A("s_lshr_b32 s24, s3, 2")
    A("s_mul_i32 s25, s24, 9363")
    A("s_lshr_b32 s25, s25, 16")
    A("s_mul_i32 s26, s25, 7")
    A("s_sub_u32 s26, s24, s26")
    A("s_bfe_u32 s27, s3, 0x10001")
    A("s_and_b32 s28, s3, 1")
    A("s_lshl_b32 s25, s25, 1")
    A("s_add_u32 s25, s25, s27")
    A(f"s_mul_i32 s25, s25, {16*896}")
    A("s_lshl_b32 s26, s26, 7")
    A("s_lshl_b32 s28, s28, 6")
    A("s_add_u32 s25, s25, s26")
    A("s_add_u32 s25, s25, s28")
    A("v_and_b32 v4, 15, v2")
    A("v_mul_u32_u24 v4, 896, v4")
    A("v_lshrrev_b32 v5, 4, v2")
    A("v_lshl_add_u32 v4, v5, 3, v4")
    A("v_add_u32 v4, s25, v4")
    A("buffer_load_dwordx2 v[24:25], v4, s[16:19], 0 offen")
    A("buffer_load_dwordx2 v[26:27], v4, s[16:19], 0 offen offset:32")
    for h in range(32):
        A(f"s_waitcnt vmcnt({33-h})")
        acc = 8 + 8 * (h % 2)
        for i in range(4):
            src = 32 + 4 * h + i
            if h < 2:
                A(f"v_lshlrev_b32 v{acc+2*i}, 16, v{src}")
                A(f"v_and_b32 v{acc+2*i+1}, 0xffff0000, v{src}")
            else:
                A(f"v_lshlrev_b32 v28, 16, v{src}")
                A(f"v_and_b32 v29, 0xffff0000, v{src}")
                A(f"v_pk_add_f32 v[{acc+2*i}:{acc+2*i+1}], v[{acc+2*i}:{acc+2*i+1}], v[28:29]")
    def rnd(b):
        for i in range(4):
            A(f"v_cvt_pk_bf16_f32 v28, v{b+2*i}, v{b+2*i+1}")
            A(f"v_lshlrev_b32 v{b+2*i}, 16, v28")
            A(f"v_and_b32 v{b+2*i+1}, 0xffff0000, v28")
    rnd(8); rnd(16)
    for i in range(8): A(f"v_mul_f32 v{32+i}, 0x{f2u(-LOG2E):x}, v{16+i}")
    for i in range(8): A(f"v_exp_f32 v{32+i}, v{32+i}")
    for i in range(8): A(f"v_add_f32 v{32+i}, 1.0, v{32+i}")
    for i in range(8): A(f"v_rcp_f32 v{32+i}, v{32+i}")
    for i in range(8): A(f"v_mul_f32 v{16+i}, v{16+i}, v{32+i}")
    rnd(16)
    for i in range(8): A(f"v_mul_f32 v{8+i}, v{8+i}, v{16+i}")
    rnd(8)
    A("s_waitcnt vmcnt(0)")
    for i in range(4):
        A(f"v_lshlrev_b32 v28, 16, v{24+i}")
        A(f"v_and_b32 v29, 0xffff0000, v{24+i}")
        A(f"v_add_f32 v{8+2*i}, v{8+2*i}, v28")
        A(f"v_add_f32 v{9+2*i}, v{9+2*i}, v29")
        A(f"v_cvt_pk_bf16_f32 v{24+i}, v{8+2*i}, v{9+2*i}")
    A("buffer_store_dwordx2 v[24:25], v4, s[20:23], 0 offen")
    A("buffer_store_dwordx2 v[26:27], v4, s[20:23], 0 offen offset:32")
    A("L2_end:")
    A("s_endpgm")
    return t


def desc(name, vg, acc, sg):
    return [f".amdhsa_kernel {name}", f"  .amdhsa_next_free_vgpr {vg}", f"  .amdhsa_next_free_sgpr {sg}", f"  .amdhsa_accum_offset {acc}",
            "  .amdhsa_group_segment_fixed_size 0", "  .amdhsa_kernarg_size 96", "  .amdhsa_user_sgpr_count 2",
            "  .amdhsa_user_sgpr_kernarg_segment_ptr 1", "  .amdhsa_system_sgpr_workgroup_id_x 1", ".end_amdhsa_kernel"]


def main():
    ref = open(f"ref.txt").read().splitlines()
    head = [l for l in ref if l.startswith(";") and "@launch" not in l and "Override launch" not in l and "grid=ceil" not in l]
    out = head + ["; @launch grid=(256,1,1) block=(256,1,1) lds=163840",
                  '.amdgcn_target "amdgcn-amd-amdhsa--gfx950"', ".text"]
    for n, body in ((f"{NAME}_kernel", k1()),):
        out += [f".globl {n}", ".p2align 8", f".type {n},@function", f"{n}:"]
        out += [("" if l.endswith(":") else "    ") + l for l in body]
    out += ['.section .rodata,"a"', ".p2align 6"] + desc(f"{NAME}_kernel", 512, 256, 102)
    open(sys.argv[1], "w").write("\n".join(out) + "\n")


main()
```

```python
import re, itertools

_ids = itertools.count(1)


class Val:
    def __init__(self, f, base, n=1, name="", vid=None):
        self.f, self.base, self.n, self.name = f, base, n, name
        self.id = vid if vid is not None else next(_ids)

    def __getitem__(self, k):
        if isinstance(k, slice):
            a = k.start or 0
            b = self.n if k.stop is None else k.stop
            assert 0 <= a < b <= self.n, (self.name, k)
            return Val(self.f, self.base + a, b - a, self.name, self.id)
        assert 0 <= k < self.n, (self.name, k)
        return Val(self.f, self.base + k, 1, self.name, self.id)

    def regs(self):
        return [(self.f, self.base + i) for i in range(self.n)]

    def new(self, name=None):
        return Val(self.f, self.base, self.n, name or self.name)

    def __str__(self):
        if self.n == 1:
            return f"{self.f}{self.base}"
        return f"{self.f}[{self.base}:{self.base + self.n - 1}]"


TRANS = ("v_exp_f32", "v_log_f32", "v_rcp_f32", "v_rsq_f32", "v_sqrt_f32")
_reg_re = re.compile(r"^(-|abs\()?([vas])(\d+)\)?$")
_rng_re = re.compile(r"^([vas])\[(\d+):(\d+)\]$")


def _opregs(op):
    op = op.strip()
    m = _reg_re.match(op)
    if m:
        return [(m.group(2), int(m.group(3)))]
    m = _rng_re.match(op)
    if m:
        return [(m.group(1), i) for i in range(int(m.group(2)), int(m.group(3)) + 1)]
    if op in ("vcc", "m0", "exec", "scc"):
        return [(op, 0)]
    if op in ("vcc_lo", "vcc_hi"):
        return [("vcc", 0)]
    return []


class I:
    def __init__(self, op, *args, mods="", tag=None, meta=None):
        self.op = op
        self.args = args
        self.mods = mods
        self.tag = tag
        self.meta = meta or {}
        self.text = op + (" " + ", ".join(str(a) for a in args) if args else "") + ((" " + mods) if mods else "")
        self._classify()

    def _classify(self):
        op, args = self.op, self.args
        nd = 1
        rw = False
        xr, xw = [], []
        if op.startswith("v_mfma"):
            k = "mfma"
        elif op.startswith("ds_read"):
            k = "ds"
        elif op.startswith("ds_write"):
            k = "ds"; nd = 0
        elif op.startswith("buffer_load") or op.startswith("global_load"):
            k = "vmem"
            if " lds" in (" " + self.mods):
                nd = 0; xr.append(("m0", 0))
        elif op.startswith("buffer_store") or op.startswith("global_store") or op.startswith("buffer_atomic"):
            k = "vmem"; nd = 0
            if self.meta.get("ret"): nd = 1; rw = True
        elif op.startswith("v_permlane"):
            k = "valu"; nd = 2; rw = True
        elif op.startswith("v_"):
            k = "trans" if op.replace("_e64", "").replace("_e32", "") in TRANS else "valu"
            if op.startswith("v_fmac") or op.startswith("v_dot2c"):
                rw = True
        elif op == "s_waitcnt":
            k = "wait"; nd = 0
        elif op == "s_barrier":
            k = "bar"; nd = 0
        elif op == "s_nop":
            k = "nop"; nd = 0
        elif op.startswith("s_cbranch") or op in ("s_branch", "s_endpgm", "s_setpc_b64"):
            k = "br"; nd = 0
            if "vcc" in op: xr.append(("vcc", 0))
            if "scc" in op: xr.append(("scc", 0))
        elif op.startswith("s_cmp") or op.startswith("s_bitcmp"):
            k = "salu"; nd = 0; xw.append(("scc", 0))
        elif op.startswith("s_load") or op.startswith("s_mem"):
            k = "smem"
        elif op.endswith(":") or op.startswith("."):
            k = "label"; nd = 0
        elif op.startswith("s_"):
            k = "salu"
            if not (op.startswith("s_mov") or op.startswith("s_mul") or op.startswith("s_getpc") or op.startswith("s_setprio") or op.startswith("s_cselect") or op.startswith("s_ff1") or op.startswith("s_bitset")):
                xw.append(("scc", 0))
            if op.startswith("s_addc") or op.startswith("s_subb") or op.startswith("s_cselect"):
                xr.append(("scc", 0))
            if op.startswith("s_setprio"): nd = 0
            if op.startswith("s_bitset") or op.startswith("s_addk"): rw = True
        else:
            raise ValueError(op)
        self.kind = k
        self.wr, self.rd = list(xw), list(xr)
        self.wvals, self.rvals = [], []
        for i, a in enumerate(args):
            regs = a.regs() if isinstance(a, Val) else _opregs(str(a))
            if isinstance(a, Neg): regs = a.v.regs()
            v = a.v if isinstance(a, Neg) else a
            if i < nd:
                self.wr += regs
                if isinstance(v, Val): self.wvals.append(v)
                if rw:
                    self.rd += regs
                    if isinstance(v, Val) and not self.meta.get("norcheck"): self.rvals.append(v)
            else:
                self.rd += regs
                if isinstance(v, Val): self.rvals.append(v)
        if k == "mfma":
            self.D = set(self.wr)
            g = lambda a: set(a.regs() if isinstance(a, Val) else _opregs(str(a)))
            self.A, self.B, self.C = g(args[1]), g(args[2]), g(args[3])
            self.passes = 8 if "32x32" in op else 4
        self.wr, self.rd = set(self.wr), set(self.rd)

    def states(self):
        if self.kind == "nop": return int(self.args[0]) + 1
        if self.kind == "label": return 0
        return 1


class Neg:
    def __init__(self, v): self.v = v
    def __str__(self): return "-" + str(self.v)


_ORDER = {"wait": 0, "salu": 0, "bar": 0, "br": 0, "nop": 0, "label": 0, "smem": 0, "ds": 1, "vmem": 2, "valu": 3, "trans": 3}


class Prog:
    def __init__(self):
        self.m = []
        self.fill = {}
        self.raw = set()

    @property
    def g(self):
        return len(self.m)

    def mfma(self, ins):
        self.m.append(ins)
        return len(self.m) - 1

    def put(self, g, ins):
        ins.pgap = max(g, -1)
        self.fill.setdefault(max(g, -1), []).append(ins)

    def spread(self, items, g0, g1, skip=None):
        gs = [g for g in range(g0, g1) if not (skip and skip(g))]
        n = len(items)
        for i, it in enumerate(items):
            g = gs[min(len(gs) - 1, i * len(gs) // n)]
            for x in (it if isinstance(it, (list, tuple)) else [it]):
                self.put(g, x)

    def fillv(self, items, g0, g1):
        def load(g):
            f = self.fill.get(g, [])
            x = sum({"valu": 1, "trans": 2, "vmem": 2, "ds": 1}.get(i.kind, 0) for i in f)
            return x
        gs = list(range(g0, g1))
        ld = [load(g) for g in gs]
        n = len(items)
        lvl = 1
        while sum(max(0, lvl - x) for x in ld) < n: lvl += 1
        base = [max(0, lvl - 1 - x) for x in ld]
        top = [i for i, x in enumerate(ld) if x < lvl]
        extra = n - sum(base)
        for k in range(extra): base[top[k * len(top) // extra]] += 1
        it = iter(items)
        for g, c in zip(gs, base):
            for _ in range(c): self.put(g, next(it))

    def linear(self):
        out = []
        last = max([len(self.m) - 1] + list(self.fill))
        for g in range(-1, last + 1):
            if 0 <= g < len(self.m):
                self.m[g].gap = g
                out.append(self.m[g])
            f = self.fill.get(g, [])
            if g not in self.raw and g != -1 and g < len(self.m) - 1:
                s = sorted(range(len(f)), key=lambda i: (10 * int(f[i].meta.get("last", 0)) + _ORDER[f[i].kind], i))
                for x in range(len(s)):
                    for y in range(x + 1, len(s)):
                        if s[x] > s[y]:
                            a, b = f[s[y]], f[s[x]]
                            if (a.wr & (b.rd | b.wr)) or (a.rd & b.wr):
                                raise RuntimeError(f"gap {g}: reordering conflict {a.text} / {b.text}")
                f = [f[i] for i in s]
            for x in f:
                x.gap = g
                out.append(x)
        return out


def insert_lgkm(lin, minage=5):
    out = []
    ds = []
    done = 0
    pend = {}
    for ins in lin:
        need = -1
        for r in (ins.rd | ins.wr):
            if r in pend and pend[r] >= done:
                need = max(need, pend[r])
        if ins.meta.get("lgkm0"):
            need = len(ds) - 1 if len(ds) > done else -1
        if need >= 0:
            pos = len(out)
            if ins.kind == "mfma":
                p = len(out)
                while p > 0 and out[p - 1].kind not in ("mfma", "label", "br"):
                    p -= 1
                nds_before = len(ds) - sum(1 for x in out[p:] if x.kind == "ds")
                if need < nds_before and p > 0 and out[p - 1].kind == "mfma":
                    pos = p
            nds = len(ds) - sum(1 for x in out[pos:] if x.kind == "ds")
            j = need
            while j + 1 < nds and ds[j + 1][0] <= ins.gap - minage:
                j += 1
            n = nds - 1 - j
            if n > 14:
                n = 14; j = nds - 1 - 14
                assert j >= need
            w = I("s_waitcnt", f"lgkmcnt({n})")
            w.gap = out[pos - 1].gap if pos > 0 else -1
            w.meta["ds_done"] = j + 1
            out.insert(pos, w)
            done = j + 1
        if ins.kind == "wait" and "dsn" in ins.meta:
            done = max(done, len(ds) - ins.meta["dsn"]); ins.meta["ds_done"] = done
        if ins.kind == "wait" and "lgkmcnt(0)" in ins.text:
            done = len(ds); ins.meta["ds_done"] = done
        if ins.kind == "ds":
            ins.ds_idx = len(ds)
            for r in ins.wr: pend[r] = len(ds)
            ds.append((ins.gap, ins.wr))
        out.append(ins)
    return out


def resolve_vm(lin):
    vm = []
    done = 0
    pend = {}
    out = []
    for ins in lin:
        if ins.kind == "wait" and "vm" in ins.meta:
            tags = ins.meta["vm"]
            idx = [i for i, t in enumerate(vm) if t in tags]
            if tags == "all": idx = list(range(len(vm)))
            last = max(idx) if idx else -1
            n = min(62, len(vm) - 1 - last)
            if last < done and not ins.meta.get("keep"):
                ins.meta["vm_done"] = done
                if ins.meta.get("drop_ok", True):
                    continue
            ins.text = f"s_waitcnt vmcnt({n})"
            done = max(done, len(vm) - n)
            ins.meta["vm_done"] = done
        else:
            for r in (ins.rd | ins.wr):
                if r in pend and pend[r] >= done and not ins.meta.get("touch"):
                    raise RuntimeError(f"vm load result not waited: {ins.text}")
        if ins.kind == "vmem":
            ins.vm_idx = len(vm)
            for r in ins.wr: pend[r] = len(vm)
            vm.append(ins.tag)
        out.append(ins)
    return out


def check_values(lin):
    own = {}
    final = {}
    for ins in lin:
        if ins.kind == "mfma":
            for v in ins.wvals:
                if v.id in final:
                    raise RuntimeError(f"accumulator {v.name} written by {ins.text} (gap {ins.gap}) after it was consumed by {final[v.id]}")
            for v in ins.rvals[:2]: final.setdefault(v.id, ins.text)
        elif not ins.meta.get("init"):
            for v in ins.rvals + ins.wvals: final.setdefault(v.id, ins.text)
        for v in ins.rvals:
            for r in v.regs():
                if own.get(r, (None,))[0] != v.id:
                    raise RuntimeError(f"value check: {ins.text} (gap {ins.gap}) expects {v.name}#{v.id} in {r}, found {own.get(r)}")
        wv = set()
        for v in ins.wvals:
            for r in v.regs():
                own[r] = (v.id, v.name); wv.add(r)
        for r in ins.wr:
            if r not in wv and r[0] in "va":
                own[r] = (None, "raw:" + ins.text)


def check_hazards(lin, fix=False):
    out = []
    probs = []
    W = 24
    for ins in lin:
        need = 0
        dist = 0
        for p in reversed(out[-W:]):
            req = 0
            isvalu = lambda x: x.kind in ("valu", "trans")
            if p.kind == "mfma":
                n = p.passes
                if ins.kind == "mfma":
                    if p.D & ins.C and not (p.D == ins.C and p.passes == ins.passes): req = max(req, n + 2)
                    if p.D & (ins.A | ins.B): req = max(req, n + 4)
                    if p.D & ins.D and not (p.D == ins.C): req = max(req, 0)
                elif isvalu(ins) or ins.kind in ("ds", "vmem"):
                    if p.D & (ins.rd | ins.wr): req = max(req, n + 4)
                    if isvalu(ins) and (p.C & ins.wr): req = max(req, n - 1)
            if isvalu(p):
                vw = {r for r in p.wr if r[0] in "va"}
                sw = {r for r in p.wr if r[0] in ("s", "vcc")}
                if ins.kind == "mfma" and vw & ins.rd: req = max(req, 2)
                if ins.op.startswith("v_permlane") and vw & ins.rd: req = max(req, 2)
                if ins.op.startswith("v_read") and vw & ins.rd: req = max(req, 1)
                if "dpp" in ins.op and vw & ins.rd: req = max(req, 2)
                if p.kind == "trans" and ins.kind == "valu" and vw & ins.rd: req = max(req, 1)
                if isvalu(ins) and sw & ins.rd: req = max(req, 2)
                if ins.kind == "vmem" and sw & ins.rd: req = max(req, 5)
                if ins.kind == "salu" and sw & ins.rd: req = max(req, 1)
            if p.kind == "salu" and ("m0", 0) in p.wr and ins.kind == "vmem" and ("m0", 0) in ins.rd: req = max(req, 1)
            if p.kind == "vmem" and "store_dwordx4" in p.op:
                data = set(p.args[0].regs()) if isinstance(p.args[0], Val) else set(_opregs(str(p.args[0])))
                if data & ins.wr: req = max(req, 2)
            if req > dist:
                need = max(need, req - dist)
                if not fix: probs.append(f"hazard: {p.text} -> {ins.text} needs {req}, has {dist} (gap {ins.gap})")
            dist += p.states()
        if need and fix:
            nop = I("s_nop", need - 1); nop.gap = ins.gap; nop.meta["fix"] = True
            probs.append(f"nop {need} before {ins.text} (gap {ins.gap})")
            out.append(nop)
        out.append(ins)
    return out, probs


def check_lds(lin):
    vm_done = 0; ds_done = 0
    pub_vm = 0; pub_ds = 0
    fill_last = {}
    rd_last = {}
    slot_unit = {}
    L_ = lambda x: x if isinstance(x, list) else [x]
    for ins in lin:
        if ins.kind == "wait":
            vm_done = max(vm_done, ins.meta.get("vm_done", 0)); ds_done = max(ds_done, ins.meta.get("ds_done", 0))
        if ins.kind == "bar":
            pub_vm, pub_ds = vm_done, ds_done
        if "unit" not in ins.meta: continue
        us, ss = L_(ins.meta["unit"]), L_(ins.meta["slot"])
        if len(us) == 1: us = us * len(ss)
        isw = ins.kind == "vmem" or ins.op.startswith("ds_write")
        for u, s in zip(us, ss):
            if isw:
                if rd_last.get(s, -1) >= pub_ds:
                    raise RuntimeError(f"LDS WAR: fill of unit {u} into slot {s} (gap {ins.gap}) before readers were fenced")
                pu = slot_unit.get(s)
                if pu is not None and pu != u and fill_last[pu][0] == "vm" and fill_last[pu][1] >= pub_vm:
                    raise RuntimeError(f"LDS WAW: fill of unit {u} into slot {s} (gap {ins.gap}) while DMA of {pu} may be in flight")
                fill_last[u] = ("vm", ins.vm_idx) if ins.kind == "vmem" else ("ds", ins.ds_idx)
                slot_unit[s] = u
            else:
                if slot_unit.get(s) != u:
                    raise RuntimeError(f"LDS: read of unit {u} finds unit {slot_unit.get(s)} in slot {s} (gap {ins.gap})")
                k, idx = fill_last[u]
                if idx >= (pub_vm if k == "vm" else pub_ds):
                    raise RuntimeError(f"LDS RAW: read of unit {u} (gap {ins.gap}) before its fill was published")
                rd_last[s] = ins.ds_idx


def gap_cost(lin):
    cost = {}
    cur = None; t = 0; prev = None
    def close():
        if cur is not None:
            tt = t
            cost[cur] = max(16, tt)
    for ins in lin:
        if ins.kind == "mfma":
            if cur is not None:
                tt = t + (4 if prev == "ds" else 0)
                cost[cur] = max(16, tt)
            cur = ins.gap; t = 4; prev = "mfma"
            continue
        if cur is None or ins.kind == "label": continue
        k = ins.kind
        if k in ("ds", "vmem", "valu", "trans"): t = max(t, 8)
        if k in ("ds", "vmem") and prev in ("valu", "trans"): t += 4
        t += {"trans": 8, "vmem": 8}.get(k, 4 * ins.states())
        if ins.op.startswith("v_permlane"): t += 4
        if ins.op.startswith("ds_write_b128"): t += 12
        prev = k
    close()
    return cost
```

```python
import sys, struct
from asmlib import *

NAME = "recurrent_scan__mha_block_cached__glu_gated_glu__prompt"
OPT = dict(stamps=False)
for a in sys.argv[2:]:
    k, v = a.split("="); OPT[k] = int(v)

f2u = lambda x: struct.unpack("<I", struct.pack("<f", x))[0]
LOG2E = 1.4426950408889634
PART = 114688
PLANE = 16 * PART
DOFF = 16 * PLANE
LEAD = 11

sX, sG, sU, sWq, sWd, sK, sV, sWo, sP = [f"s[{b}:{b+3}]" for b in range(28, 64, 4)]
sHEAD, sQB, sW, sM4K, sM2K, sMQ, sOK, sOV = "s64 s65 s66 s67 s68 s69 s70 s71".split()
sTMP = ["s72", "s73", "s74", "s75"]
sCNT, sTHR, sRET = "s76", "s77", "s[78:79]"
sMASK = ["s[80:81]", "s[82:83]", "s[84:85]", "s[86:87]"]
sXQ = "s88"
sST = "s89"

sDBG, sR, sOut = "s[4:7]", "s[8:11]", "s[12:15]"
sRB, sOB, sBIT, sQ16, sDH, sHUGE3 = "s92", "s93", "s94", "s95", "s3", "s97"
sFL, sTHRP, sGO, sAT = "s[16:19]", "s26", "s27", "s1"
FOFF = 2 * DOFF
STS = [20, 22, 24, 68, 84, 82, 80, 86, 70, 78, 72]
OOB = 0x80000000

V = lambda b, n=1, name="": Val("v", b, n, name)
A_ = lambda b, n=1, name="": Val("a", b, n, name)


def k1():
    P = Prog()
    pre = lambda *a, **k: P.put(-1, I(*a, **k))
    slow_sites = []
    stamp_n = [0]

    def stamp(g):
        if not OPT["stamps"]: return
        i = stamp_n[0]; stamp_n[0] += 1
        P.put(g, I("s_memtime", f"s[{STS[i]}:{STS[i]+1}]"))
    early = []
    def estamp(g):
        if OPT["stamps"] != 2: return
        i = len(early); early.append(i)
        P.put(g, I("s_memtime", "s[78:79]")); P.put(g, I("s_waitcnt", "lgkmcnt(0)")); P.put(g, I("v_mov_b32", f"v{248+i}", "s78"))

    tid = V(0, 1, "tid")
    gq = [V(8 + j, 1, f"gq{j}") for j in range(8)]
    voffG, voffQ, voffDO, voffSt, kbase, vbase, voffKV0, dobase = [V(i, 1, n) for i, n in zip(range(0, 8), "voffG voffQ voffDO voffSt kbase vbase voffKV0 dobase".split())]
    st = [V(16 + i, 1, f"st{i}") for i in range(6)]
    T0 = 24
    XCB, GB = 32, 144

    pre("s_load_dwordx16", "s[4:19]", "s[0:1]", 0)
    pre("s_load_dwordx8", "s[20:27]", "s[0:1]", 64)
    pre("s_cmp_ge_u32", "s2", 256)
    pre("s_cbranch_scc1", "L_end")
    HX = OPT.get("hx", 2)
    LNW = 6 if HX == 2 else 5
    L, Q15, G_, RR, CC, LH, LC, t1, t2, t3, KEY = [f"v{204+i}" for i in range(11)]
    pre("s_getpc_b64", "s[90:91]")
    pre("L_pc0:")
    pre("s_lshr_b32", "s97", "s2", 3)
    pre("s_and_b32", "s96", "s97", 15)
    pre("s_lshl_b32", "s96", "s96", 13)
    pre("v_lshl_add_u32", "v200", "v0", 5, "s96")
    pre("v_min_u32", "v200", "L_k1_last-L_pc0", "v200")
    pre("global_load_dword", "v202", "v200", "s[90:91]", tag="code")
    assert HX == 2
    XB = 49152
    def srd(dst, ptr, mul_s, mul_c, nrec, sub=False):
        b = int(dst[2:dst.index(":")])
        pre("s_mul_i32", "s96", mul_s, mul_c)
        pre("s_add_u32", f"s{b}", f"s{ptr}", "s96")
        pre("s_addc_u32", f"s{b+1}", f"s{ptr+1}", 0)
        pre("s_and_b32", f"s{b+1}", f"s{b+1}", 0xffff)
        if sub: pre("s_sub_u32", f"s{b+2}", nrec, "s96")
        else: pre("s_mov_b32", f"s{b+2}", nrec)
        pre("s_mov_b32", f"s{b+3}", 0x20000)
    pre("v_lshrrev_b32", t1, 6, "v0")
    pre("v_and_b32", L, 63, "v0")
    pre("v_readfirstlane_b32", sW, t1)
    pre("v_lshrrev_b32", G_, 4, L)
    pre("v_lshrrev_b32", t3, 3, L)
    pre("v_lshl_add_u32", t3, t1, 5, t3)
    pre("v_mul_u32_u24", "v215", 896, t3)
    pre("v_and_b32", t1, 7, L)
    pre("v_xor_b32", t1, t1, G_)
    pre("v_lshl_add_u32", "v216", t1, 4, "v215")
    pre("v_xor_b32", "v217", 64, "v216")
    pre("v_add_u32", "v218", 2 * 6144, "v216")
    pre("v_add_u32", "v219", 3 * 6144, "v217")
    pre("v_add_u32", "v217", 6144, "v217")
    pre("s_lshr_b32", sQB, "s2", 4)
    pre("s_mul_i32", sXQ, sW, 28672)
    pre("s_add_u32", "m0", sXQ, XB)
    pre("s_waitcnt", "lgkmcnt(0)")
    estamp(-1)
    srd(sX, 4, sQB, 128 * 896, 128 * 896)
    XJ = OPT.get("xj", 2)
    def x_dma(j0, j1):
        for j in range(j0, j1):
            for rho in range(4):
                pre("buffer_load_dwordx4", f"v{216+rho}", sX, "s0", mods=f"offen offset:{1024*rho} lds", tag=("x", j))
            if j < j1 - 1:
                pre("s_addk_i32", "m0", 4096)
                pre("s_addk_i32", "s0", 128)
    pre("s_mov_b32", "s0", 0)
    x_dma(0, XJ)
    estamp(-1)
    pre("v_and_b32", Q15, 15, L)
    pre("v_lshrrev_b32", RR, 2, Q15)
    pre("v_and_b32", CC, 3, L)
    pre("v_lshrrev_b32", LH, 5, L)
    pre("v_and_b32", LC, 31, L)
    pre("s_and_b32", "s3", "s2", 7)
    pre("s_lshl_b32", "s3", "s3", 1)
    pre("s_and_b32", sHEAD, "s97", 1)
    pre("s_add_u32", sHEAD, sHEAD, "s3")
    pre("s_lshl_b32", "s97", sQB, 2)
    pre("s_add_u32", "s97", "s97", sW)
    pre("s_lshl_b32", sM4K, sW, 12)
    pre("s_lshl_b32", sM2K, sW, 11)
    pre("s_lshr_b32", "s92", sW, 1)
    pre("s_and_b32", "s93", sW, 1)
    pre("s_lshl_b32", "s94", "s92", 5)
    pre("s_lshl_b32", "s95", "s93", 3)
    pre("s_add_u32", "s94", "s94", "s95")
    pre("s_lshl_b32", sMQ, "s94", 8)
    pre("s_lshl_b32", "s95", "s93", 2)
    pre("v_or_b32", KEY, "s95", G_)
    pre("v_lshrrev_b32", t1, 1, Q15)
    pre("v_xor_b32", t1, t1, KEY)
    pre("v_and_b32", t2, 1, L)
    pre("v_lshlrev_b32", t2, 4, t2)
    pre("v_lshl_add_u32", t2, t1, 5, t2)
    pre("s_lshl_b32", "s95", sW, 3)
    pre("v_add_u32", t3, "s95", G_)
    pre("v_mul_u32_u24", t3, 3584, t3)
    pre("v_add_u32", t3, t3, t2)
    pre("v_cmp_eq_u32", "vcc", 7, t1)
    pre("v_mov_b32", "v201", 0x40000000)
    pre("v_add_u32", t1, "s94", G_)
    pre("v_cndmask_b32", voffG, t3, "v201", "vcc")
    pre("v_lshl_add_u32", voffQ, t1, 13, t2)

    def touch(voff, srd_, soff=0):
        return I("buffer_load_dword", "v22", voff, srd_, soff, mods="offen", tag="touch", meta=dict(touch=True))
    srd(sG, 16, sHEAD, 224, 448 * 3584, sub=True)
    srd(sU, 18, sHEAD, 224, 448 * 3584, sub=True)

    units = []
    units += [("G", k) for k in range(14)] + [("Q", n) for n in range(7)]
    mix = {0: "QDQQDQQDQDQDDD", 1: "QQDQDQDQDQQDDD", 2: "QDQDQQDQQQDDDD"}[OPT.get("mix", 0)]
    cn = {"Q": 7, "D": 0}
    for c in mix:
        units.append((c, cn[c])); cn[c] += 1
    assert cn == {"Q": 14, "D": 7}
    units += [("N", 0), ("K", 0), ("K", 1)]
    for T in range(1, 32): units += [("K", 2 * T), ("K", 2 * T + 1), ("V", 2 * T - 2), ("V", 2 * T - 1)]
    units += [("V", 62), ("V", 63)] + [("O", n) for n in range(14)]
    NU = len(units)
    UO = units.index(("O", 0))
    slot = lambda u: u % 8 if u < UO else (u - 2) % 8
    voffKV = [voffKV0, V(0, 1, "voffKV1"), V(1, 1, "voffKV2"), V(21, 1, "voffKV3")]
    tmpc = [0]

    def dma_ops(u):
        kind, n = units[u]
        sb = slot(u) * 16384
        meta = dict(unit=u, slot=slot(u))
        out = []
        def so(val):
            s = sTMP[tmpc[0] % 4]; tmpc[0] += 1
            return s, I("s_mov_b32", s, val)
        def ld(voff, srd_, soff, off):
            return I("buffer_load_dwordx4", voff, srd_, soff, mods=f"offen offset:{off} lds", tag=("u", u), meta=meta)
        if kind == "N":
            pass
        elif kind == "G":
            s0, i0 = so(n * 32 * 3584); s1, i1 = so(n * 32 * 3584 + 4 * 3584 - 1024)
            out.append(([I("s_add_u32", "m0", sM2K, sb), i0], ld(voffG, sG, s0, 0)))
            out.append(([i1], ld(voffG, sG, s1, 1024)))
            out.append(([I("s_add_u32", "m0", sM2K, sb + 8192)], ld(voffG, sU, s0, 0)))
            out.append(([], ld(voffG, sU, s1, 1024)))
        elif kind == "Q":
            half, nn = n // 7, n % 7
            for i in range(4):
                s, ii = so(half * 256 + (64 * nn + 16 * (i >> 1) + 4 * (i & 1)) * 8192 - 1024 * (i & 1))
                m = [I("s_add_u32", "m0", sMQ, sb + 4096 * (i >> 1))] if i % 2 == 0 else []
                out.append((m + [ii], ld(voffQ, sWq, s, 1024 * (i & 1))))
        elif kind in "DO":
            base = n * 128 if kind == "D" else (n // 2) * 128 + (n % 2) * 128 * 896
            for i in range(4):
                s, ii = so(base + i * (8 * 896 - 1024))
                m = [I("s_add_u32", "m0", sM4K, sb)] if i == 0 else []
                out.append((m + [ii], ld(voffDO, sWd if kind == "D" else sWo, s, 1024 * i)))
        else:
            s = sOK if kind == "K" else sOV
            for i in range(4):
                m = [I("s_add_u32", "m0", sM4K, sb), I("s_add_u32", s, s, 16384)] if i == 0 else []
                if i == 0 and OPT.get("rot"): m = m[1:] + [I("s_and_b32", s, s, 0xfffff)] + m[:1]
                out.append((m, ld(voffKV[i], sK if kind == "K" else sV, s, 1024 * i)))
        return out

    def dma_now(us):
        for u in us:
            for sal, d in dma_ops(u):
                for x in sal: P.put(-1, x)
                if sal and sal[-1].args[0] == "m0": pre("s_nop", 0)
                P.put(-1, d)
    NPRE = 3
    NP0 = OPT.get("npre", 2)
    NPA = min(NP0, OPT.get("npa", 1))
    dma_now(range(NPA))
    pre("v_lshl_add_u32", t1, L, LNW, "s97")
    pre("v_lshrrev_b32", t2, 2, t1)
    pre("v_and_b32", t1, 3, t1)
    pre("v_mul_u32_u24", t3, 3584, t2)
    pre("v_mul_u32_u24", "v203", 72, t1)
    pre("v_add_u32", "v203", "v203", t3)
    pre("v_lshlrev_b32", t1, 7, t1)
    pre("v_lshl_add_u32", st[5], t2, 13, t1)
    pre("s_lshl_b32", "s97", "s97", 16 - LNW)
    pre("v_lshl_add_u32", "v23", L, 10 - LNW, "s97")
    if OPT.get("tpos", 1) == 1:
        P.put(-1, touch("v203", sG)); P.put(-1, touch("v203", sU))
    srd(sWq, 10, sHEAD, 512, 448 * 8192, sub=True)
    srd(sWd, 20, sHEAD, 112 * 896, 112 * 896)
    srd(sK, 6, sHEAD, 1 << 20, 1 << 20)
    srd(sV, 8, sHEAD, 1 << 20, 1 << 20)
    srd(sWo, 12, sHEAD, 256 * 896, 256 * 896)
    pre("s_lshl_b32", "s97", sHEAD, 4)
    pre("s_add_u32", "s97", "s97", sQB)
    srd(sP, 26, "s97", PART, DOFF + PART)
    if OPT["stamps"]:
        pre("s_mov_b32", "s98", "s26"); pre("s_mov_b32", "s99", "s27")
    if OPT.get("rot"):
        pre("s_mul_i32", sOK, sHEAD, OPT["rot"] * 16384)
        pre("s_mov_b32", sOV, sOK)
    else:
        pre("s_mov_b32", sOK, -16384 & 0xffffffff)
        pre("s_mov_b32", sOV, -16384 & 0xffffffff)
    pre("s_mov_b32", sTHR, f2u(2.0 ** 30))
    pre("v_bfe_u32", t1, L, 1, 2)
    pre("v_xor_b32", t1, t1, G_)
    pre("v_and_b32", t2, 1, L)
    pre("v_lshlrev_b32", t2, 4, t2)
    pre("v_lshl_add_u32", t2, t1, 5, t2)
    pre("v_add_u32", voffDO, "v215", t2)
    pre("v_lshrrev_b32", t1, 1, Q15)
    pre("v_xor_b32", t1, t1, G_)
    pre("v_lshlrev_b32", t1, 4, t1)
    pre("v_lshl_add_u32", t1, Q15, 7, t1)
    pre("s_add_u32", "s95", sXQ, XB)
    pre("v_add_u32", "v198", "s95", t1)
    pre("v_xor_b32", "v199", 64, "v198")
    pre("v_lshl_add_u32", voffSt, L, 4, sXQ)
    pre("v_and_b32", t1, 7, L)
    pre("v_lshlrev_b32", t1, 1, t1)
    pre("v_lshrrev_b32", t2, 3, Q15)
    pre("v_or_b32", t1, t1, t2)
    pre("v_and_b32", t2, 1, G_)
    pre("v_lshl_or_b32", t2, t2, 1, LH)
    pre("v_xor_b32", t1, t1, t2)
    pre("v_lshlrev_b32", t1, 4, t1)
    pre("s_lshl_b32", "s95", "s93", 14)
    pre("v_add_u32", t1, "s95", t1)
    pre("v_lshl_add_u32", kbase, Q15, 9, t1)
    pre("v_lshl_add_u32", t1, G_, 2, RR)
    pre("v_and_b32", t2, 7, t1)
    pre("v_lshlrev_b32", t2, 5, t2)
    pre("v_lshl_add_u32", t1, t1, 9, t2)
    pre("v_lshlrev_b32", t2, 3, CC)
    pre("v_lshlrev_b32", t3, 4, LH)
    pre("v_xor_b32", t2, t2, t3)
    pre("v_add3_u32", vbase, t1, t2, "s95")
    pre("v_lshl_or_b32", t1, LH, 1, "s93")
    pre("v_xor_b32", t1, t1, LC)
    if OPT.get("lin"): pre("v_mov_b32", t1, LC)
    pre("v_lshlrev_b32", t1, 4, t1)
    pre("v_lshl_add_u32", t1, LH, 9, t1)
    pre("v_add_u32", voffKV0, sM4K, t1)
    pre("v_lshl_add_u32", t1, G_, 2, RR)
    pre("v_bfe_u32", t2, t1, 1, 2)
    pre("v_lshlrev_b32", t2, 5, t2)
    pre("v_lshl_add_u32", t1, t1, 7, t2)
    pre("v_lshl_add_u32", dobase, CC, 3, t1)
    pre("v_and_b32", t1, 1, G_)
    pre("v_lshl_or_b32", t1, t1, 2, RR)
    pre("v_lshlrev_b32", t1, 5, t1)
    pre("v_lshl_add_u32", t1, CC, 3, t1)
    pre("v_lshl_add_u32", t2, G_, 3, RR)
    pre("v_lshl_add_u32", gq[0], t2, 8, t1)
    for j in range(1, 8): pre("v_xor_b32", gq[j], 32 * j, gq[0])
    for r in range(3): pre("v_cmp_eq_u32", sMASK[r], r + 1, CC)
    pre("v_cmp_eq_u32", sMASK[3], RR, G_)
    srd(sR, 26, sQB, PART, 2 * DOFF, sub=True)
    srd(sOut, 22, sQB, 128 * 896, 128 * 896)
    pre("s_mov_b32", "s4", "s24"); pre("s_and_b32", "s5", "s25", 0xffff); pre("s_mov_b32", "s6", 256); pre("s_mov_b32", "s7", 0x20000)
    pre("s_cmp_eq_u32", sW, 3)
    pre("s_cselect_b32", sHUGE3, 0x40000000, 0)
    pre("s_lshl_b32", "s96", sW, 7)
    pre("s_and_b32", "s3", sHEAD, 1)
    pre("s_lshl_b32", "s3", "s3", 6)
    pre("s_add_u32", "s96", "s96", "s3")
    pre("s_lshr_b32", "s3", sHEAD, 1)
    pre("s_mul_i32", "s3", "s3", 16 * 896)
    pre("s_add_u32", sOB, "s96", "s3")
    pre("s_lshr_b32", "s3", sHEAD, 2)
    pre("s_mul_i32", "s3", "s3", 28672)
    pre("s_add_u32", sRB, sM4K, "s3")
    pre("s_and_b32", "s3", sHEAD, 3)
    pre("s_lshl_b32", "s3", "s3", 10)
    pre("s_add_u32", sRB, sRB, "s3")
    pre("s_sub_u32", sRB, sRB, sXQ)
    pre("s_lshl_b32", sBIT, 1, sHEAD)
    pre("s_lshl_b32", sQ16, sQB, 4)
    pre("s_add_u32", "s26", "s26", FOFF)
    pre("s_addc_u32", "s27", "s27", 0)
    srd(sFL, 26, sQB, 4096 * OPT.get('fmul', 1), 4096)
    pre("v_lshlrev_b32", "v200", 4, voffSt)
    pre("v_mov_b32", "v201", 0)
    pre("s_lshl_b32", sST, sHEAD, 2)
    clr = I("buffer_store_dword", "v201", "v200", sFL, sST, mods="offen sc1", tag="st")
    pre("s_mov_b32", "s3", "s2")
    pre("s_mul_i32", "s96", "s3", 13108)
    pre("s_lshr_b32", "s96", "s96", 16)
    pre("s_mul_i32", "s96", "s96", 5)
    pre("s_sub_u32", "s3", "s3", "s96")
    pre("s_sub_u32", sTHRP, 12, "s3")
    pre("s_mov_b32", sAT, sQ16)
    pre("s_mov_b32", sGO, 0)
    pre("s_mov_b32", sCNT, 13)
    pre("s_mov_b32", sDH, OOB)
    ones = V(220, 4, "ones")
    for i in range(4): pre("v_mov_b32", ones[i], 0x3f803f80)
    estamp(-1)
    if XJ < 7:
        pre("s_add_u32", "m0", sXQ, XB + 4096 * XJ)
        pre("s_mov_b32", "s0", 128 * XJ)
        x_dma(XJ, 7)
    dma_now(range(NPA, NP0))
    if OPT.get("tpos", 1) == 3:
        P.put(-1, touch("v203", sG)); P.put(-1, touch("v203", sU))

    ring = [0]
    abase = {}
    dsq = []

    ringregs = [[("a", 4 * i) for i in range(16)]]
    def new_frag():
        rr_ = ringregs[0][ring[0] % len(ringregs[0])]
        f = Val(rr_[0], rr_[1], 4, f"frag{ring[0]}"); ring[0] += 1
        return f

    def rebase(addr, off, g):
        cur = abase.get(addr[0].base, 0)
        want = off & 0x10000
        if want != cur:
            nv = addr[0].new()
            P.put(g - 1, I("v_xor_b32", nv, 0x10000, addr[0]))
            addr[0] = nv; abase[nv.base] = want
        return off & 0xffff

    def rd_tr(g, dst, addr, off, u, dual=False):
        if dual: a, imm = addr[off >> 16], off & 0xffff
        else: imm = rebase(addr, off, g); a = addr[0]
        P.put(g, I("ds_read_b64_tr_b16", dst, a, mods=f"offset:{imm}", meta=dict(unit=u, slot=slot(u))))

    def mf(D, A, B, C=None, k16=False):
        return P.mfma(I("v_mfma_f32_16x16x16_bf16" if k16 else "v_mfma_f32_16x16x32_bf16", D, A, B, D if C is None else C))

    ustart = {}

    def sync(u, g, dma_gaps=None, extra=()):
        tags = [("u", x) for x in (u + 1, u + 2)] + list(extra)
        if u + 2 < NU and units[u + 2][0] in "KV": tags.append(("u", u + 3))
        P.put(g - 1, I("s_waitcnt", "vmcnt(?)", meta=dict(vm=tags, keep=True)))
        P.put(g, I("s_barrier"))
        if u == 0: return
        grp = []
        for x in (u + 6, u + 7):
            if x < NU and not (UO <= x < UO + 8): grp += dma_ops(x)
        gs = dma_gaps or [g + 3 + (3 if units[u + 1][0] == "N" else 6) * i for i in range(8)]
        for (sal, d), gg in zip(grp, gs):
            for i, x in enumerate(sal): P.put(gg - len(sal) + i, x)
            P.put(gg, d)

    def lin_touch(g, srd_, off):
        if not OPT.get("touch", 1): return
        P.put(g - 1, I("s_mov_b32", "s96", off)); P.put(g, touch("v23", srd_, "s96"))

    sumacc = [V(224 + 4 * qs, 4, f"sum{qs}") for qs in range(2)]
    pu = V(232, 16, "preunp")
    xraw = {}
    for k in range(14):
        for qs in range(2):
            xraw[k, qs] = V(XCB + 8 * k + 4 * qs, 4, f"xraw{k}_{qs}")
            g = P.g - 8
            if qs == 0 and k % 2 == 0: P.put(g - 1, I("s_waitcnt", "vmcnt(?)", meta=dict(vm=[("x", k // 2)])))
            P.put(g, I("ds_read_b128", xraw[k, qs], "v199" if k & 1 else "v198", mods=f"offset:{4096*(k>>1)+2048*qs}"))
            mf(sumacc[qs], ones, xraw[k, qs], 0 if k == 0 else None)
    grp = [x for u in range(NP0, NPRE) for x in dma_ops(u)]
    if OPT.get("tpos", 1) == 0: grp = [([], touch("v203", sG)), ([], touch("v203", sU))] + grp
    if OPT.get("tpos", 1) == 2: grp = grp + [([], touch("v203", sG)), ([], touch("v203", sU))]
    grp.append(([], clr))
    for i, (sal, d) in enumerate(grp):
        gg = 2 + 3 * i if len(grp) <= 8 else 2 + (24 * i) // len(grp)
        for q, x in enumerate(sal): P.put(gg - len(sal) + q, x)
        P.put(gg, d)
    grp = [x for u in range(NPRE, 8) for x in dma_ops(u)]
    for i, (sal, d) in enumerate(grp):
        gg = P.g + 2 + 3 * i
        for q, x in enumerate(sal): P.put(gg - len(sal) + q, x)
        P.put(gg, d)
    if OPT["stamps"] == 2:
        for gg in (0, 13, 26):
            P.raw.add(gg); estamp(gg)
    ops = []
    for qs in range(2):
        for i in range(4):
            ops += [I("v_lshlrev_b32", pu[8 * qs + 2 * i], 16, xraw[0, qs][i]), I("v_and_b32", pu[8 * qs + 2 * i + 1], 0xffff0000, xraw[0, qs][i])]
    P.spread(ops, 10, 26)
    g = P.g - 1
    P.raw.add(g)
    mean = [V(T0 + qs, 1, "mean") for qs in range(2)]
    mr = [st[0], st[1]]; dl = [st[2], st[3]]
    pk = V(T0 + 2, 1, "pk")
    P.put(g, I("s_waitcnt", "vmcnt(?)", meta=dict(vm=[("u", 0)], keep=True)))
    P.put(g, I("s_barrier"))
    g_first_reads = g
    estamp(g)
    if OPT["stamps"] == 2:
        for i in early: P.put(g, I("v_readfirstlane_b32", f"s{[20,21,22,23,24,25,78,79][i]}", f"v{248+i}"))
        stamp_n[0] = len(early)
        OPT["stamps"] = 0; OPT["_st"] = 1
    late = []
    for qs in range(2): late.append(I("v_mul_f32", mean[qs], f2u(1.0 / 448), sumacc[qs][0]))
    late.append(I("v_cvt_pk_bf16_f32", pk, mean[0], mean[1]))
    late.append(I("v_lshlrev_b32", mr[0], 16, pk))
    late.append(I("v_and_b32", mr[1], 0xffff0000, pk))
    for qs in range(2): late.append(I("v_sub_f32", dl[qs], mean[qs], mr[qs]))
    xc = {}
    for qs in range(2):
        xc[0, qs] = xraw[0, qs].new(f"xc0_{qs}")
        for i in range(8): late.append(I("v_sub_f32", pu[8 * qs + i], pu[8 * qs + i], mr[qs]))
        for i in range(4): late.append(I("v_cvt_pk_bf16_f32", xc[0, qs][i], pu[8 * qs + 2 * i], pu[8 * qs + 2 * i + 1]))

    def center(k):
        o = []
        for qs in range(2):
            xc[k, qs] = xraw[k, qs].new(f"xc{k}_{qs}")
            t = V(T0, 8, "ctmp")
            for i in range(4):
                o += [I("v_lshlrev_b32", t[2 * i], 16, xraw[k, qs][i]), I("v_and_b32", t[2 * i + 1], 0xffff0000, xraw[k, qs][i])]
            for i in range(8): o.append(I("v_sub_f32", t[i], t[i], mr[qs]))
            for i in range(4): o.append(I("v_cvt_pk_bf16_f32", xc[k, qs][i], t[2 * i], t[2 * i + 1]))
        return o

    gqa = [[x] for x in gq]
    clampg = lambda g: max(g, g_first_reads)

    stamp(P.g - 1)
    gacc = {(j, img, qs): V(GB + 16 * j + 8 * qs + 4 * img, 4, f"gacc{j}{img}{qs}") for j in range(7) for img in range(2) for qs in range(2)}
    gram = [A_(192 + 4 * qs, 4, f"gram{qs}") for qs in range(2)]
    for k in range(14):
        u = k
        g0 = ustart[u] = P.g
        nxt = center(k + 1) if k < 13 else []
        for qs in range(2): mf(gram[qs], xc[k, qs], xc[k, qs], 0 if k == 0 else None)
        for j in range(7):
            for img in range(2):
                f = new_frag()
                for e in range(2):
                    rd_tr(clampg(P.g - LEAD + e), f[2 * e:2 * e + 2], gqa[j], slot(u) * 16384 + img * 8192 + 4 * e * 256, u)
                for qs in range(2): mf(gacc[j, img, qs], f, xc[k, qs], 0 if k == 0 else None)
        if k == 0:
            for x in late: P.put(g_first_reads, x)
        if nxt: P.spread(nxt, g0, P.g - 2)
        if u % 2 == 0: sync(u, g0 + 3)
    P.put(ustart[3] + 24, touch(st[5], sWq))
    for i in range(2): lin_touch(ustart[5 + 2 * i] + 24, sWd, 65536 * i)
    for i in range(3): lin_touch(ustart[9 + 2 * i] + 24, (sK, sV, sK)[i], 65536 * (i // 2))
    o = []
    cq, cg, sd = [st[0].new("cq0"), st[1].new("cq1")], [st[2].new("cg0"), st[3].new("cg1")], [st[4], st[5].new("sd1")]
    for qs in range(2):
        t = V(T0, 8, "gtmp")
        for r in range(4): o.append(I("v_accvgpr_read_b32", t[r], gram[qs][r]))
        for r in range(3): o.append(I("v_cndmask_b32", t[0], t[0], t[r + 1], sMASK[r]))
        o.append(I("v_cndmask_b32", t[0], 0, t[0], sMASK[3]))
        for sw in ("v_permlane32_swap_b32", "v_permlane16_swap_b32"):
            o += [I("v_mov_b32", t[1], t[0]), I(sw, t[0], t[1]), I("v_add_f32", t[0], t[0], t[1])]
        o.append(I("v_mul_f32", t[1], dl[qs], dl[qs]))
        o.append(I("v_mul_f32", t[0], f2u(1.0 / 448), t[0]))
        o.append(I("v_sub_f32", t[0], t[0], t[1]))
        o.append(I("v_max_f32", t[0], 0, t[0]))
        rnd = lambda: [I("v_cvt_pk_bf16_f32", t[0], t[0], t[0]), I("v_lshlrev_b32", t[0], 16, t[0])]
        o += rnd()
        o.append(I("v_add_f32", t[0], f2u(1e-5), t[0]))
        o += rnd()
        o.append(I("v_sqrt_f32", t[0], t[0]))
        o += [I("v_cvt_pk_bf16_f32", t[0], t[0], t[0]), I("v_lshlrev_b32", sd[qs], 16, t[0])]
        o.append(I("v_rcp_f32", t[0], sd[qs]))
        o.append(I("v_mul_f32", cq[qs], f2u(LOG2E / 16), t[0]))
        o.append(I("v_mul_f32", cg[qs], f2u(-LOG2E), t[0]))
    stat_ops = o

    stamp(P.g - 1)
    qacc = {(dt, qs): A_(128 + 8 * dt + 4 * qs, 4, f"qacc{dt}_{qs}") for dt in range(16) for qs in range(2)}
    def q_unit(u, n):
        half, nn = n // 7, n % 7
        g0 = ustart[u] = P.g
        for ks in range(2):
            k = 2 * nn + ks
            for j in range(8):
                f = new_frag()
                for e in range(2):
                    rd_tr(P.g - LEAD + e, f[2 * e:2 * e + 2], gqa[j], slot(u) * 16384 + (32 * ks + 4 * e) * 256, u)
                for qs in range(2): mf(qacc[8 * half + j, qs], f, xc[k, qs], 0 if k == 0 else None)
        if u % 2 == 0: sync(u, g0 + 3)
    hh = {}
    o = []
    for j in range(7):
        for qs in range(2):
            ga, ua = gacc[j, 0, qs], gacc[j, 1, qs]
            for r in range(4): o.append(I("v_mul_f32", ga[r], cg[qs], ga[r]))
            for r in range(4): o.append(I("v_exp_f32", ga[r], ga[r]))
            for r in range(4): o.append(I("v_fma_f32", ga[r], ga[r], sd[qs], sd[qs]))
            for r in range(4): o.append(I("v_rcp_f32", ga[r], ga[r]))
            for r in range(4): o.append(I("v_mul_f32", ua[r], ga[r], ua[r]))
            if j % 2 == 0: hh[j // 2, qs] = ga.new(f"hh{j//2}_{qs}")
            h = hh[j // 2, qs]
            for i in range(2): o.append(I("v_cvt_pk_bf16_f32", h[2 * (j % 2) + i], ua[2 * i], ua[2 * i + 1]))
    gepi = o
    GG = lambda j, x: GB + 16 * j + 4 * x
    xg = [XCB + 4 * i for i in range(28)]
    QG = [GG(4, 1), GG(4, 3), GG(6, 1), GG(6, 3)] + xg[:3] + xg[4:] + [xg[3]]
    qf = {}
    for half in range(2):
        for oth in range(2):
            for ks in range(4 * half, 4 * half + 4):
                for q in range(2): qf[ks, 2 * oth + q] = V(QG[len(qf)], 4, f"qf{ks}_{2*oth+q}")
    xw, xrd = V(xg[3], 1, "xw"), V(xg[3] + 1, 1, "xrd")
    SP = 131072

    def qepi(ks, qs):
        t = V(T0, 8, "qtmp"); f = qf[ks, qs]
        o = []
        for i in range(8): o.append(I("v_accvgpr_read_b32", t[i], qacc[2 * ks + i // 4, qs][i % 4]))
        for i in range(8): o.append(I("v_mul_f32", t[i], cq[qs], t[i]))
        for i in range(4): o.append(I("v_cvt_pk_bf16_f32", f[i], t[2 * i], t[2 * i + 1]))
        o += [I("v_permlane16_swap_b32", f[0], f[2]), I("v_permlane16_swap_b32", f[1], f[3], meta=dict(qw=(ks, qs)))]
        return o
    qa = [x for ks in range(4) for qs in range(2) for x in qepi(ks, qs)]
    qb = [x for ks in range(4, 8) for qs in range(2) for x in qepi(ks, qs)]
    doa = [[dobase]] + [[V(17 + i, 1, f"do{i}")] for i in range(1, 4)]
    adr_do = [I("v_xor_b32", doa[s][0], 32 * s, dobase) for s in range(1, 4)]
    adr_kv = [I("v_xor_b32", voffKV[i], 64 * i, voffKV0) for i in range(1, 4)]

    def do_unit(u, B, nks, acc, first, last_half=False):
        done = {}
        for T in range(4):
            for ks in range(nks):
                f = new_frag()
                k16 = last_half and ks == nks - 1
                for e in range(1 if k16 else 2):
                    rd_tr(P.g - LEAD + e, f[2 * e:2 * e + 2], doa[T], slot(u) * 16384 + (32 * ks + 16 * e) * 128, u)
                for qs in range(2):
                    c = 0 if (first and ks == 0) else None
                    if k16: mf(acc[T, qs], f[0:2], B[ks, qs][0:2], c, k16=True)
                    else: mf(acc[T, qs], f, B[ks, qs], c)
            done[T] = P.g - 1
        return done

    def do_epi(acc, p, soff, scale=None):
        o = []
        for qs in range(2):
            a, b = acc[2 * p, qs], acc[2 * p + 1, qs]
            if scale:
                for x in (a, b):
                    for r in range(4): o.append(I("v_mul_f32", x[r], scale[qs], x[r]))
            pkd = a.new("pkd")
            o += [I("v_cvt_pk_bf16_f32", pkd[0], a[0], a[1]), I("v_cvt_pk_bf16_f32", pkd[1], a[2], a[3]),
                  I("v_cvt_pk_bf16_f32", pkd[2], b[0], b[1]), I("v_cvt_pk_bf16_f32", pkd[3], b[2], b[3])]
            if qs == 0: o.append(I("s_mov_b32", sST, soff))
            o.append(None)
            o.append(I("buffer_store_dwordx4", pkd, voffSt, sP, sST, mods=f"offen offset:{(2*qs+p)*1024} sc1", tag="st"))
        return o

    def seq(ops, g0, per=1):
        g = g0; c = 0
        for x in ops:
            if x is None:
                g += 1; c = 0; continue
            P.put(g, x)
            if x.kind != "salu":
                c += 1
                if c >= per: g += 1; c = 0
        return g

    dfree = [GB + 16 * j + 4 * i for j in (1, 3, 5) for i in range(4)] + [GB + 16 * j + 8 * qs + 4 for j in (0, 2) for qs in range(2)]
    def dacc(j): return {(T, qs): V(dfree[8 * (j % 2) + 2 * T + qs], 4, f"dacc{j}_{T}{qs}") for T in range(4) for qs in range(2)}

    def d_unit(u, j):
        g0 = ustart[u] = P.g
        acc = dacc(j)
        done = do_unit(u, hh, 4, acc, True, last_half=True)
        for p in range(2): seq(do_epi(acc, p, DOFF + j * 4096), done[2 * p + 1] + 4)
        if u % 2 == 0: sync(u, g0 + 3)
    for u in range(14, 35):
        if u == 21: stamp(P.g - 1)
        (q_unit if units[u][0] == "Q" else d_unit)(u, units[u][1])
    gK0 = P.g
    uend = lambda u: ustart[u + 1] if u + 1 in ustart else P.g
    uD0 = units.index(("D", 0)); uQe = units.index(("Q", 13))
    for i in range(3): lin_touch(ustart[15 + 4 * i] + 24, (sV, sK, sV)[i], 65536 * ((i + 3) // 2))
    P.fillv(stat_ops + gepi + adr_do, ustart[13] + 5, ustart[uD0] - LEAD - 2)
    P.spread(adr_kv, ustart[29] + 20, ustart[29] + 28)
    P.put(ustart[22] + 0, I("s_mul_i32", "s96", sW, 28672 - 8192))
    P.put(ustart[22] + 1, I("s_sub_u32", "s96", SP, "s96"))
    P.put(ustart[22] + 2, I("v_add_u32", xw, "s96", voffSt))
    P.put(ustart[22] + 3, I("v_xor_b32", xrd, 8192, xw))
    ext = [GG(3, 0) + i for i in range(16)]
    kreg = [4, 8, 9, 10, 11, 12, 13, 14]
    vreg = [5, 15, 18, 19, 20] + ext[:11]
    ka = [[kbase if (i, h) == (0, 0) else V(kreg[4 * h + i], 1, f"ka{h}{i}") for h in range(2)] for i in range(4)]
    va = [[vbase if (j, h) == (0, 0) else V(vreg[8 * h + j], 1, f"va{h}{j}") for h in range(2)] for j in range(8)]
    adr_k = [I("v_xor_b32", ka[i][h], 64 * i + 0x10000 * h, kbase) for i in range(4) for h in range(2) if (i, h) != (0, 0)]
    adr_v = [I("v_xor_b32", va[j][h], 32 * j + 0x10000 * h, vbase) for j in range(8) for h in range(2) if (j, h) != (0, 0)]
    P.fillv(qa, max(ustart[uD0] - LEAD - 2, ustart[21] + 4), ustart[uQe + (uQe % 2) - 2] - 10)
    P.fillv(adr_k + qb, uend(uQe) + 4 - 7, gK0 - 10)
    def q_write(ops):
        for x in ops:
            if "qw" in x.meta:
                ks, qs = x.meta["qw"]
                P.put(x.pgap + 1, I("ds_write_b128", xw, qf[ks, qs], mods=f"offset:{1024*(2*(ks%4)+qs)}", meta=dict(unit=("qx", ks // 4), slot="sp")))
    def q_read(half, g, step):
        for i in range(8):
            ks, q = 4 * half + i // 2, i % 2
            P.put(g + step * i, I("ds_read_b128", qf[ks, 2 + q], xrd, mods=f"offset:{1024*i}", meta=dict(unit=("qx", half), slot="sp")))
    q_write(qa); q_write(qb)
    ub = uQe + (uQe % 2) - 2
    q_read(0, ustart[ub] + 4, 4)

    O = {(dt, qs): A_(64 * qs + 4 * dt, 4, f"O{dt}_{qs}") for dt in range(16) for qs in range(4)}
    SG = {(0, 0): GG(0, 1), (0, 1): GG(0, 3), (0, 2): GG(2, 1), (0, 3): GG(2, 3), (1, 0): GG(0, 0), (1, 1): GG(0, 2), (1, 2): GG(2, 0), (1, 3): GG(2, 2)}
    PG = [GG(1, q) for q in range(4)]
    RG = [GG(5, q) for q in range(4)]
    negm = [V(x, 4, f"negm{q}") for q, x in enumerate((GG(4, 0), GG(4, 2), GG(6, 0), GG(6, 2)))]
    lsum = [V(24 + q, 1, f"l{q}") for q in range(4)]
    PSB = 28
    mxr, vcode, vbit, voffA, vpoll = V(16, 1, "mx"), V(17, 1, "vcode"), V(ext[11], 1, "vbit"), V(ext[12], 1, "voffA"), V(ext[13], 1, "vpoll")
    S, Pv, ps = {}, {}, {}
    ringregs[0] = [("v", x) for x in RG]
    pm = lambda u: dict(unit=[u, u + 1], slot=[slot(u), slot(u + 1)])

    def kk_unit(u, T):
        ustart[u] = P.g
        for sub in range(2):
            for qs in range(4): S[T, sub, qs] = V(SG[sub, qs], 4, f"S{T}_{sub}{qs}")
            for ks in range(8):
                f = new_frag()
                off = slot(u) * 16384 + 8192 * sub + 256 * (ks >> 2)
                P.put(P.g - 12, I("ds_read_b128", f, ka[ks & 3][off >> 16], mods=f"offset:{off & 0xffff}", meta=pm(u)))
                for qs in range(4): mf(S[T, sub, qs], f, qf[ks, qs], None if ks else (0 if T == 0 else negm[qs]))

    def vv_unit(u, T):
        ustart[u] = P.g
        for dt in range(16):
            f = new_frag()
            for e in range(2):
                off = slot(u) * 16384 + 8192 * e + 256 * (dt >> 3)
                P.put(P.g - 12 + e, I("ds_read_b64_tr_b16", f[2 * e:2 * e + 2], va[dt & 7][off >> 16], mods=f"offset:{off & 0xffff}", meta=pm(u)))
            for qs in range(4): mf(O[dt, qs], f, Pv[T, qs], 0 if T == 0 else None)

    def softmax_ops(T):
        for qs in range(4):
            Pv[T, qs] = V(PG[qs], 4, f"P{T}_{qs}")
            ps[T, qs] = V(PSB + qs, 1, f"ps{T}_{qs}")
        ea = []; cv = {0: [], 1: []}
        for sub in range(2):
            for qs in range(4):
                src = S[T, sub, qs]
                x = src if T < 31 else qf[sub, qs].new(f"E{sub}{qs}")
                for r in range(4):
                    if sub == 0 and r == 0: ad = None
                    elif sub == 0 and r == 1: ad = I("v_add_f32", ps[T, qs], x[0], x[1])
                    else: ad = I("v_add_f32", ps[T, qs], ps[T, qs], x[r])
                    ea.append((I("v_exp_f32", x[r], src[r]), ad))
                cv[sub].append([I("v_cvt_pk_bf16_f32", Pv[T, qs][2 * sub + i], x[2 * i], x[2 * i + 1]) for i in range(2)])
        return ea, cv

    def check_ops(T):
        mx = mxr.new()
        return [I("v_max3_f32", mx, ps[T, 0], ps[T, 1], ps[T, 2]), I("v_max_f32", mx, mx, ps[T, 3]), I("v_cmp_nge_f32", "vcc", sTHR, mx)]
    def check_br(g, site, kback):
        P.put(g, I("s_cbranch_vccnz", f"L_slow_{site}", meta=dict(last=True)))
        P.put(g, I(f"L_back_{site}:", meta=dict(last=True)))
        if (site, kback) not in slow_sites: slow_sites.append((site, kback))
    def after_check(T, cv, g):
        for qs in range(4):
            P.put(g + 1 + 4 * (qs // 2), I("v_add_f32", lsum[qs], lsum[qs], ps[T, qs]))
            for x in cv[1][qs]: P.put(g + 3 + 4 * qs, x)

    EXG = list(range(35, 52, 2)) + [54, 55, 58, 59, 62, 63, 66] + list(range(70, 99, 4)) + [102, 103, 106, 107, 110, 111, 114, 115]
    ADG = [g + 1 if g < 52 else (g + 2 if g % 4 == 2 else g + 2) for g in EXG]
    DMA1 = [6 + 4 * i for i in range(8)]; DMA2 = [71 + 4 * i for i in range(8)]
    kq = [0]
    _dma = dma_ops
    def dma_ops(u):
        if units[u][0] == "K": kq[0] = units[u][1] + 1
        return _dma(u)
    kq[0] = max(n + 1 for u, (k_, n) in enumerate(units[:42]) if k_ == "K")

    stamp(P.g - 1)
    loop_first, loop_n = 2, 14
    tl = loop_first + 2 * loop_n
    misc = [I("v_lshrrev_b32", vcode, 1, "v23"), I("v_add_u32", vcode, "L_tail-L_pc0", vcode), I("v_min_u32", vcode, "L_k1_last-L_pc0", vcode),
            I("v_lshlrev_b32", voffA, 4, voffSt), I("v_mov_b32", vbit, sBIT)]
    vdt, vtm = V(ext[14], 1, "vdt"), V(ext[15], 1, "vtm")
    BG = OPT.get("dbig", 1)
    misc += [I("v_subrev_u32", vtm, sXQ, voffSt), I("v_and_b32", vdt, (0x1f0 >> BG) & 0x1f0, vtm), I("v_lshl_add_u32", vdt, vdt, 1 + BG, sRB), I("v_add_u32", vdt, sXQ, vdt),
             I("v_lshrrev_b32", vtm, 9, vtm), I("v_lshl_add_u32", vdt, vtm, 14, vdt), I("v_mul_lo_u32", vtm, vtm, sHUGE3), I("v_add_u32", vdt, vdt, vtm)]
    if BG: misc += [I("v_subrev_u32", vtm, sXQ, voffSt), I("v_bfe_u32", vtm, vtm, 9 - BG, BG), I("v_mul_u32_u24", vtm, PLANE, vtm), I("v_add_u32", vdt, vdt, vtm)]
    DT0 = OPT.get("dt0", 3)
    for T in range(32):
        uk = 36 if T == 0 else 38 + 4 * (T - 1)
        g0 = P.g
        inloop = loop_first <= T < tl
        pos = (T - loop_first) % 2
        if pos == 0 and loop_first < T <= tl:
            P.put(g0, I("s_sub_u32", sCNT, sCNT, 1))
            P.put(g0 + 1, I("s_cbranch_scc0", "L_loop", meta=dict(last=True)))
        if pos == 0 and inloop: P.put(g0 + 1, I("L_loop:", meta=dict(last=True)))
        if T == loop_first: stamp(g0)
        if T == tl and not OPT.get("st2"): stamp(g0 + 4)
        kk_unit(uk, T)
        sync(uk, g0 + 3, dma_gaps=[g0 + x for x in DMA1])
        ea, cv = softmax_ops(T)
        site = f"w{pos}" if inloop else f"p{T}"
        if T == 0:
            q_read(1, g0 + 5, 1)
            o = []
            for qs in range(4):
                t = V(PG[qs], 2, "mtmp"); x = S[0, 0, qs]
                o += [I("v_max3_f32", t[0], x[0], x[1], x[2]), I("v_max_f32", t[0], t[0], x[3])]
            for sw in ("v_permlane32_swap_b32", "v_permlane16_swap_b32"):
                tt = [o[2 * qs].args[0] for qs in range(4)]
                t1s = [Val("v", x.base + 1, 1, "mtmp", x.id) for x in tt]
                o += [I("v_mov_b32", b_, a_) for a_, b_ in zip(tt, t1s)] + [I(sw, a_, b_) for a_, b_ in zip(tt, t1s)] + [I("v_max_f32", a_, a_, b_) for a_, b_ in zip(tt, t1s)]
            for qs in range(4):
                for r in range(4): o.append(I("v_sub_f32", negm[qs][r], 0, tt[qs]))
                for r in range(4): o.append(I("v_add_f32", S[0, 0, qs][r], S[0, 0, qs][r], negm[qs][0]))
            for q in range(0, 16, 4): o += [x[0] for x in ea[q:q + 4]] + [x[1] for x in ea[q:q + 4] if x[1]]
            P.fillv([I("v_mov_b32", lsum[qs], 0) for qs in range(4)], g0 + 14, g0 + 30)
            P.fillv(o[:-20], g0 + 34, g0 + 63)
            gl = g0 + 63
            o = o[-20:] + [x for qs in range(4) for x in cv[0][qs]]
            for qs in range(4):
                for r in range(4): o.append(I("v_add_f32", S[0, 1, qs][r], S[0, 1, qs][r], negm[qs][0]))
            for q in range(16, 32, 4): o += [x[0] for x in ea[q:q + 4]] + [x[1] for x in ea[q:q + 4]]
            o += check_ops(0)
            for x in o: P.put(gl, x)
            check_br(gl, site, kq[0] - 1)
            after_check(0, cv, gl + 1)
            P.fillv(adr_v, gl + 19, gl + 34)
            P.fillv(misc, gl + 60, gl + 110)
            continue
        vv_unit(uk + 2, T - 1)
        sync(uk + 2, g0 + 67, dma_gaps=[g0 + x for x in DMA2], extra=["st"] if T == loop_first else [])
        for (ex, ad), ge, ga in zip(ea, EXG, ADG):
            P.put(g0 + ge, ex)
            if ad: P.put(g0 + ga, ad)
        c = check_ops(T)
        P.put(g0 + 118, c[0]); P.put(g0 + 118, c[1]); P.put(g0 + 119, c[2])
        for qs in range(4):
            for x in cv[0][qs]: P.put(g0 + 124 + qs, x)
        check_br(g0 + 127, site, kq[0] - 1 - 2 * T)
        if T < 31: after_check(T, cv, g0 + 128)
        if T < tl:
            P.put(g0 + 120, I("s_add_u32", "s96", sOK, (5 if pos else 3) * 16384)); P.put(g0 + 121, touch("v23", sK if pos else sV, "s96"))
        if OPT.get("dtouch", 1):
            if pos == 0 and inloop:
                for i, x in enumerate([I("s_cmp_eq_u32", sCNT, DT0), I("s_cselect_b32", "s96", sGO, 0), I("s_cmp_lg_u32", "s96", 0), I("s_cselect_b32", sDH, DOFF - (PLANE << OPT.get("dbig", 1)), sDH)]):
                    P.put(g0 + 23 + i, x)
            BIG = OPT.get("dbig", 1)
            for gg in {0: (33, 123), 1: (38, 101), 2: (101,), 3: (38,)}[OPT.get("dtg", 2)] if 1 < T < 31 else ():
                P.put(g0 + gg - (3 if gg == 33 else 1), I("s_add_u32", sDH, sDH, PLANE << BIG))
                tt_ = touch(vdt, sR, sDH); tt_.mods += " sc1"; tt_.text += " sc1"; P.put(g0 + gg, tt_)
        if pos == 0 and inloop:
            P.put(g0 + 122, I("buffer_atomic_or", vbit, voffA, sDBG, sAT, mods="offen", tag="flag"))
            P.put(g0 + 123, I("s_mov_b32", sAT, OOB))
            P.put(g0 + 15, I("s_cmp_lt_u32", sCNT, sTHRP))
            P.put(g0 + 16, I("s_cselect_b32", sTMP[2], sQ16, OOB))
            P.put(g0 + 17, I("buffer_load_dword", vpoll, "off", sDBG, sTMP[2], mods="sc1", tag="poll"))
        if pos == 1 and (inloop or T == 1):
            P.put(g0 + 25, I("s_and_b32", "s96", sCNT, 3)); P.put(g0 + 26, I("s_lshl_b32", "s96", "s96", 16)); P.put(g0 + 27, touch("v23", sWo, "s96"))
            P.put(g0 + 122, I("global_load_dword", "v22", vcode, "s[90:91]", tag="touch", meta=dict(touch=True)))
        if pos == 1 and inloop:
            P.put(g0 + 29, I("v_readfirstlane_b32", "s96", vpoll))
            P.put(g0 + 31, I("s_cmp_eq_u32", "s96", 0xffff))
            P.put(g0 + 32, I("s_cselect_b32", sGO, 1, sGO))
            P.put(g0 + 33, I("s_cselect_b32", sTHRP, 0, sTHRP))
        if T == tl:
            P.put(g0 + 40, I("s_cmp_eq_u32", sGO, 0))
            P.put(g0 + 41, I("s_cbranch_scc1", "L_dlate"))
            P.put(g0 + 41, I("L_dback:"))

    uV = UO - 2
    g0 = P.g; gl = g0 - 1
    xs = [slot(uV + i) if False else (uV + i) % 8 for i in range(2, 8)] + ["sp"]
    xbase = [xs[0] * 16384, xs[2] * 16384, xs[4] * 16384, SP]
    xw, xrd, sw_, srd_ = V(4, 1, "xw"), V(8, 1, "xrd"), V(9, 1, "sw"), V(10, 1, "sr")
    stt = V(SG[0, 0], 4, "stat"); sti = V(SG[0, 1], 4, "statin")
    gx = ustart[uV - 2] + 8
    for i, x in enumerate([I("s_mov_b32", "s72", xbase[0]), I("s_mov_b32", "s73", xbase[1]), I("s_cmp_ge_u32", sW, 2), I("s_cselect_b32", "s72", xbase[2], "s72"),
                           I("s_cselect_b32", "s73", xbase[3], "s73"), I("s_bitcmp1_b32", sW, 0), I("s_cselect_b32", "s74", "s73", "s72"), I("s_cselect_b32", "s75", "s72", "s73"),
                           I("s_sub_u32", "s74", "s74", sXQ), I("s_sub_u32", "s75", "s75", sXQ), I("s_mul_i32", "s96", sW, 28672 - 1024), I("s_sub_u32", "s96", SP + 28672, "s96")]):
        P.put(gx + i, x)
    for i, x in enumerate([I("v_add_u32", xw, "s74", voffSt), I("v_add_u32", xrd, "s75", voffSt), I("v_add_u32", sw_, "s96", voffSt), I("v_xor_b32", srd_, 1024, sw_)]):
        P.put(gx + 15 + 4 * i, x)
    voffR = [V(11, 1, "voffR0"), V(12, 1, "voffR1")]; voffF = V(13, 1, "voffF")
    gq_ = ustart[uV - 2]
    for i, x in enumerate([I("v_add_u32", voffR[0], sRB, voffSt), I("v_add_u32", voffR[1], 16384, voffR[0]), I("v_add_u32", voffR[1], sHUGE3, voffR[1])]):
        P.put(gq_ - 11 + 4 * i + (1 if i else 0) * 0, x) if False else P.put(gq_ + 3, x)
    EG = [qf[sub, qs].base for sub in range(2) for qs in range(4)]
    QG = [x for x in QG if x not in EG] + EG
    dq = {}
    dgaps = [g for g in range(gq_ + 7, gq_ + 36, 4)] + [gq_ + x for x in (53, 57, 58, 59)] + [g0 + x for x in (3, 8, 9)]
    dgaps = sorted(dgaps + [g for g in range(gq_ + 24, gq_ + 52) if g % 4 == (gq_ + 1) % 4] + [g0 + 12 + i for i in range(0, 20, 2)])
    assert len(dgaps) == 32, len(dgaps)
    for i, g in enumerate(dgaps):
        h, m = i // 2, i % 2
        dq[h, m] = V(QG[i], 4, f"dq{h}_{m}")
        sd_ = (sDH, "s0")[h % 2]
        if m == 0: P.put(g - 1, I("s_mov_b32", sd_, DOFF + h * PLANE))
        if not OPT.get("nodld"): P.put(g, I("buffer_load_dwordx4", dq[h, m], voffR[m], sR, sd_, mods="offen sc1", tag=("dld", h)))
    post = [x for qs in range(4) for x in cv[1][qs]]
    for x in post: x.meta["last"] = 2; P.put(gl, x)
    vv_unit(uV, 31)
    o = [I("v_add_f32", stt[2 + q], lsum[2 + q], ps[31, 2 + q]) for q in range(2)] + [I("v_mov_b32", stt[q], negm[2 + q][0]) for q in range(2)]
    for i, x in enumerate(o): P.put(g0 + i // 2, x)
    P.put(g0 + 2, I("ds_write_b128", sw_, stt, meta=dict(unit="stat", slot="stat")))
    P.put(g0 + 6, I("s_waitcnt", "lgkmcnt(2)", meta=dict(dsn=2)))
    sync(uV, g0 + 7)
    P.put(g0 + 10, I("ds_read_b128", sti, srd_, meta=dict(unit="stat", slot="stat")))
    rr_ = V(SG[0, 2], 2, "r"); dif = V(SG[0, 2] + 2, 2, "dif"); rl = [V(16, 1, "rl0"), V(17, 1, "rl1")]
    lown = [lsum[q] for q in range(2)]
    o = [I("v_add_f32", lsum[q], lsum[q], ps[31, q]) for q in range(2)]
    o += [I("v_sub_f32", dif[q], negm[q][0], sti[q]) for q in range(2)]
    o += [I("v_exp_f32", rr_[q], dif[q]) for q in range(2)]
    o += [I("v_max_f32", mxr.new(), dif[0], dif[1])]
    o += [I("v_cmp_lt_f32", "vcc", f2u(60.0), o[-1].args[0])]
    for i, x in enumerate(o): P.put(g0 + 20 + (i // 2) * 4 + i % 2, x)
    P.put(g0 + 39, I("s_barrier"))
    xm = lambda late: dict(unit="X", slot=xs + (["stat"] if late else []))
    for dt in range(16):
        for q in range(2):
            P.put(g0 + 4 * dt + 10 + q, I("ds_write_b128", xw, O[dt, 2 + q], mods=f"offset:{1024*(2*dt+q)}", meta=xm(dt >= 14)))
    sel = [V(SG[0, 3], 4, "sel0"), V(SG[0, 0], 4, "sel1")]
    ra, rb, rc = [V(SG[1, 0] + i, 1, f"r{i}") for i in range(3)]
    o = [I("v_subrev_u32", voffF, sXQ, voffSt), I("v_lshrrev_b32", voffF, 2, voffF),
         I("v_bfe_u32", ra, voffF, 5, 1), I("v_bfe_u32", rb, voffF, 3, 1), I("v_lshl_add_u32", ra, ra, 1, rb),
         I("v_bfe_u32", rb, voffF, 4, 1), I("v_lshlrev_b32", rb, 1, rb), I("v_lshrrev_b32", rc, 6, voffF), I("v_xor_b32", rb, rb, rc),
         I("v_lshl_add_u32", ra, rb, 2, ra),
         I("v_and_b32", rb, 4, voffF), I("v_lshlrev_b32", rb, 2, rb), I("v_mov_b32", rc, 0x3f80), I("v_lshlrev_b32", rb, rb, rc)]
    for i in range(0, 8, 2):
        o += [I("v_cmp_eq_u32", "s[26:27]", i, ra), I("v_cmp_eq_u32", "s[74:75]", i + 1, ra),
              I("v_cndmask_b32", sel[i // 4][i % 4], 0, rb, "s[26:27]"), I("v_cndmask_b32", sel[i // 4][i % 4 + 1], 0, rb, "s[74:75]")]
    P.fillv(o, g0 + 34, g0 + 62)
    stamp(P.g - 1)
    dsum = [A_(192 + 4 * i, 4, f"dsum{i}") for i in range(4)]
    for h in range(16):
        if not OPT.get("nodld"): P.put(P.g - 1, I("s_waitcnt", "vmcnt(?)", meta=dict(vm=[("dld", h)])))
        for i in range(4):
            if OPT.get("nodld"): mf(dsum[i], sel[i % 2], str(dq[h, i // 2]), 0 if h == 0 else None)
            else: mf(dsum[i], sel[i % 2], dq[h, i // 2], 0 if h == 0 else None)
    gl = P.g - 1
    P.raw.add(gl)
    P.put(g0 + 73, I("s_cbranch_vccnz", "L_mfix")); P.put(g0 + 73, I("L_mback:"))
    P.put(g0 + 77, I("s_waitcnt", "lgkmcnt(0)")); P.put(g0 + 78, I("s_barrier"))
    def dma_raw(us):
        r = []
        for u in us:
            for sal, d in dma_ops(u): r.append(sal + [d])
        return r
    for i, gr in enumerate(dma_raw([UO, UO + 1])):
        for q, y in enumerate(gr): P.put(g0 + 81 + 3 * i - (len(gr) - 1 - q), y)
    xin = {}
    for ks in range(8):
        for q in range(2):
            for hf in range(2):
                dt = 2 * ks + hf
                xin[dt, q] = V(QG[4 * ks + 2 * q + hf], 4, f"xin{dt}_{q}")
                g = min(gl, max(g0 + 79 + 4 * ks, g0 + 72 + 8 * ks - (4 if q == 0 else 2)) + 2 * q + hf)
                P.put(g, I("ds_read_b128", xin[dt, q], xrd, mods=f"offset:{1024*(2*dt+q)}", meta=xm(True)))
    doa = [[doa[0][0]]] + [[V(17 + i, 1, f"do{i}")] for i in range(1, 4)]
    for i in range(1, 4):
        P.put(g0 + 64 + i, I("v_xor_b32", doa[i][0], 32 * i, doa[0][0])); abase[17 + i] = abase.get(7, 0)
    of = {}
    def merge(ks):
        o = []
        for q in range(2):
            t = V(SG[1, 2 * q], 4, "mt0"), V(SG[1, 2 * q + 1], 4, "mt1")
            for hf in range(2):
                for i in range(4): o.append(I("v_accvgpr_read_b32", t[hf][i], O[2 * ks + hf, q][i]))
            for hf in range(2):
                for i in range(4): o.append(I("v_fmac_f32", t[hf][i], rr_[q], xin[2 * ks + hf, q][i]))
            of[ks, q] = xin[2 * ks, q].new(f"of{ks}_{q}")
            for hf in range(2):
                for i in range(2): o.append(I("v_cvt_pk_bf16_f32", of[ks, q][2 * hf + i], t[hf][2 * i], t[hf][2 * i + 1]))
        return o
    P.fillv(merge(0) + merge(1), g0 + 82, gl)
    for x in merge(2): P.put(gl, x)
    P.put(gl, I("s_waitcnt", "lgkmcnt(0)")); P.put(gl, I("s_waitcnt", "vmcnt(?)", meta=dict(vm=[("u", UO), ("u", UO + 1)], keep=True))); P.put(gl, I("s_barrier"))
    g_first = gl
    m23 = merge(3); m47 = [x for ks in range(4, 8) for x in merge(ks)]
    lo = []
    for q in range(2):
        t = V(26 + 2 * q, 2, "ltmp")
        lo.append(I("v_fma_f32", t[0], rr_[q], sti[2 + q], lown[q]))
        for sw in ("v_permlane32_swap_b32", "v_permlane16_swap_b32"):
            lo += [I("v_mov_b32", t[1], t[0]), I(sw, t[0], t[1]), I("v_add_f32", t[0], t[0], t[1])]
        lo.append(I("v_rcp_f32", rl[q], t[0]))

    ringregs[0] = [("a", 128 + 4 * i) for i in range(16)]
    _put = P.put
    P.put = lambda g, ins: _put(max(g, g_first), ins)
    OG = [PG, RG], [[x.base for x in negm], [SG[1, q] for q in range(4)]]
    for j in range(7):
        acc = {(T, qs): V(OG[j % 2][T // 2][2 * (T % 2) + qs], 4, f"oacc{j}_{T}{qs}") for T in range(4) for qs in range(2)}
        for half in range(2):
            u = UO + 2 * j + half
            g0 = ustart[u] = P.g
            done = do_unit(u, {(ks, qs): of[4 * half + ks, qs] for ks in range(4) for qs in range(2)}, 4, acc, half == 0)
            if j == 0 and half == 0:
                grp = dma_raw(range(UO + 2, UO + 8))
                for i, x in enumerate(m23):
                    P.put(g_first, x)
                    if i % 5 == 4:
                        for y in grp[i // 5]: P.put(g_first, y)
                for i, gr in enumerate(grp[8:]):
                    for q, y in enumerate(gr): P.put(g0 + 3 + 3 * i - (len(gr) - 1 - q), y)
            if half == 0 and j > 0: sync(u, g0 + 3)
        if j == 0:
            sync(UO, ustart[UO + 1] + 12)
            P.fillv(m47, ustart[UO], ustart[UO + 1] - 1)
            P.fillv(lo, ustart[UO + 1], ustart[UO + 1] + 16)
        gn = seq(do_epi(acc, 0, j * 4096, rl), done[1] + 4)
        seq(do_epi(acc, 1, j * 4096, rl), max(gn, done[3] + 4))
    P.put = _put
    if OPT.get("st2"): stamp(ustart[UO + OPT["st2"]])
    gend = max(P.fill) + 1
    voffO = [V(4, 1, "voffO"), V(5, 1, "voffO1")]
    ra, rb = V(8, 1, "ra"), V(9, 1, "rb")
    o = [I("v_min_u32", "v14", 60, voffF), I("v_bfe_u32", ra, voffF, 2, 4), I("v_mul_u32_u24", ra, 896, ra), I("v_lshrrev_b32", rb, 6, voffF),
         I("v_lshl_add_u32", ra, rb, 4, ra), I("v_add_u32", voffO[0], sOB, ra), I("v_add_u32", voffO[1], sHUGE3, voffO[0])]
    P.fillv(o, ustart[UO + 2], ustart[UO + 5])
    xr = [V(ext[0], 4, "xr0"), V(ext[4], 4, "xr1")]
    for m in range(2):
        P.put(ustart[UO + 5] + 14 + 6 * m, I("buffer_load_dwordx4", xr[m], voffO[m], sX, 0, mods=f"offen offset:{512*m}", tag="xr"))
    sDONE, sAV, sH8 = "s72", "s73", "s77"
    NS = OPT.get("nslot", 8)
    sgrp = [QG[2 * i + 1] for i in range(16)]
    slots = []
    P.put(ustart[UO + 5] + 20, I("s_lshl_b32", sH8, sHEAD, 8))
    P.put(ustart[UO + 8] + 27, I("s_mov_b32", sDONE, 0))
    if NS:
        for rnd_, (gp, ga, gb, ns) in enumerate(((ustart[UO + 7] + 28, ustart[UO + 8] + 28, ustart[UO + 11] + 16, NS // 2), (ustart[UO + 10] + 20, ustart[UO + 11] + 16, P.g - 1, NS - NS // 2))):
            vp = vpoll.new()
            P.put(gp, I("buffer_load_dword", vp, "v14", sFL, sH8, mods="offen sc1", tag=("poll", rnd_)))
            P.put(ga, I("s_waitcnt", "vmcnt(?)", meta=dict(vm=[("poll", rnd_)])))
            P.put(ga, I("v_cmp_ne_u32", "vcc", 0, vp))
            P.put(ga + 2, I("s_andn2_b32", sAV, "vcc_lo", sDONE))
            P.put(ga + 3, I("s_and_b32", sAV, sAV, 0xffff))
            step = (gb - ga - 4) // ns
            assert step >= 8
            for i in range(ns):
                g = ga + 4 + step * i
                P.put(g, I("s_ff1_i32_b32", "s96", sAV))
                P.put(g + 1, I("s_mul_i32", "s74", "s96", PLANE))
                P.put(g + 2, I("s_bitset1_b32", sDONE, "s96"))
                P.put(g + 3, I("s_cmp_lg_u32", sAV, 0))
                P.put(g + 4, I("s_cselect_b32", "s74", "s74", OOB))
                P.put(g + 5, I("s_bitset0_b32", sAV, "s96"))
                sv = [V(sgrp[2 * len(slots) + m], 4, f"slot{len(slots)}") for m in range(2)]; slots.append(sv)
                for m in range(2):
                    P.put(g + 5 + 2 * m, I("buffer_load_dwordx4", sv[m], voffR[m], sR, "s74", mods="offen sc1", tag="slot"))
    stamp(gend)

    lin = P.linear()
    out = []; held = []
    for ins in lin:
        if ins.kind == "mfma":
            held.sort(key=lambda x: (int(x.meta["last"]), x.kind == "label"))
            out += held; held = []
        if ins.meta.get("last"): held.append(ins)
        else: out.append(ins)
    lin = out + held
    lin = insert_lgkm(lin, OPT.get("minage", 8))
    lin = resolve_vm(lin)
    check_values(lin)
    lin, probs = check_hazards(lin, fix=True)
    check_lds(lin)
    _, p2 = check_hazards([x for x in lin if not x.meta.get("opt")])
    assert not p2, p2
    lastw = None
    for ins in lin:
        if ins.gap >= 0 and ("scc", 0) in ins.rd:
            assert lastw.op.startswith("s_cmp") or lastw.op.startswith("s_bitcmp") or lastw.text.startswith(f"s_sub_u32 {sCNT}"), (lastw.text, ins.text)
        if ("scc", 0) in ins.wr: lastw = ins
    cost = gap_cost(lin)
    marks = [("sum", 0), ("G", ustart[0]), ("Q", ustart[14]), ("D", ustart[28]), ("T0", ustart[36]), ("T1", ustart[38]), ("T2", ustart[42]), ("T3", ustart[46]), ("T4", ustart[50]), ("V31", ustart[uV]), ("O", ustart[UO]), ("end", len(P.m))]
    for (n, a), (_, b) in zip(marks, marks[1:]):
        print(f"  model {n}: gaps {b-a} cycles {sum(cost.get(g, 0) for g in range(a, b))}", file=sys.stderr)
    print(f"  nops inserted: {len(probs)}", file=sys.stderr)
    for p in probs[:400]:
        if OPT.get("shownops"): print("   ", p, file=sys.stderr)

    idx = [i for i, x in enumerate(lin) if x.text == "L_loop:"]
    ends = [i for i, x in enumerate(lin) if x.text == "s_cbranch_scc0 L_loop"]
    assert len(idx) == len(ends) == loop_n
    body = [x.text for x in lin[idx[0]:ends[0] + 1]]
    for a, b in zip(idx[1:], ends[1:]):
        other = [x.text for x in lin[a:b + 1]]
        for q, (x, y) in enumerate(zip(body, other)):
            if x != y and x.startswith("s_waitcnt vmcnt(") and y.startswith("s_waitcnt vmcnt("):
                body[q] = other[q] = min(x, y, key=lambda z: int(z[16:-1]))
        if other != body:
            for q, (x, y) in enumerate(zip(body, other)):
                if x != y: raise RuntimeError(f"loop not periodic at {q}: {x} | {y}")
            raise RuntimeError("loop length differs")
    for a, b in zip(ends, idx[1:]): assert b == a + 1
    q = ends[0] - 1
    while not lin[q].text.startswith(f"s_sub_u32 {sCNT}"):
        assert ("scc", 0) not in lin[q].wr, lin[q].text
        q -= 1
    if OPT.get("novm"): body = [x for x in body if "vmcnt" not in x]
    if OPT.get("nobar"): body = [x for x in body if "s_barrier" not in x]
    if OPT.get("nodma"): body = [x for x in body if " lds" not in x]
    if OPT.get("nolgkm"): body = [x for x in body if "lgkmcnt" not in x]
    if OPT.get("novalu"): body = [x for x in body if not (x.startswith("v_") and not x.startswith("v_mfma") and not x.startswith("v_cmp"))]
    if OPT.get("notouch"): body = [x for x in body if "v22" not in x]
    if OPT.get("halfds"):
        nb = []; c = 0
        import re as _re
        for x in body:
            if x.startswith("ds_read"):
                r = int(_re.search(r"a\[(\d+)", x).group(1))
                if (r // 4) % 2:
                    c += 1
                    if OPT["halfds"] == 2 and c % 6 == 0: nb.append("ds_read_b128 a[240:243], v36 offset:0")
                    if OPT["halfds"] == 2 and c % 6 == 3: nb.append("ds_write_b64 v11, v[96:97] offset:0")
                    continue
            if "lgkmcnt" in x: x = "s_waitcnt lgkmcnt(%d)" % (int(x[18:-1]) // 2 + (1 if OPT["halfds"] == 2 else 0))
            nb.append(x)
        body = nb
        if OPT["halfds"] == 2: body = ["v_lshlrev_b32 v11, 1, v12", "v_add_u32 v11, 0x20000, v11"] + body
    if OPT.get("nods"): body = [x for x in body if not x.startswith("ds_read")]
    if OPT.get("notr"): body = [x for x in body if not x.startswith("ds_read_b64")]
    if OPT.get("nob128"): body = [x for x in body if not x.startswith("ds_read_b128")]
    txt = [x.text for x in lin[:idx[0]]] + [".p2align 3"] * 0 + body + ["L_tail:"] + [x.text for x in lin[ends[-1] + 1:]]
    if OPT.get("all_nobar"): txt = [x for x in txt if "s_barrier" not in x]
    if OPT.get("all_novm"): txt = [x for x in txt if "vmcnt" not in x]
    if OPT.get("all_nolgkm"): txt = txt[:200] + [x for x in txt[200:] if "lgkmcnt" not in x]
    if OPT.get("all_nodma"): txt = [x for x in txt if " lds" not in x]
    if OPT.get("all_nods"): txt = [x for x in txt if not x.startswith("ds_read")]
    hreg = [8 * i for i in range(16)]
    g4 = lambda b_: f"v[{b_}:{b_+3}]"
    AC, GV, TM, XF = PG, [x.base for x in negm], [SG[1, q] for q in range(4)], RG
    el = lambda grp, i: f"v{grp[i // 4] + i % 4}"
    def foldx(acc, src, first=False):
        return [f"v_mfma_f32_16x16x32_bf16 {g4(acc[i])}, {sel[i % 2]}, {src[i // 2]}, {0 if first else g4(acc[i])}" for i in range(4)]
    fold = lambda base: foldx(AC, [f"a[{base}:{base+3}]", f"a[{base+4}:{base+7}]"])
    fin = [f"s_lshl_b32 s74, {sHEAD}, 2", f"s_and_b32 {sDONE}, {sDONE}, 0xffff"]
    fin += [f"v_accvgpr_read_b32 {el(GV, i)}, {dsum[i // 4][i % 4]}" for i in range(16)]
    fin += [f"v_mul_f32 {el(TM, i)}, 0x{f2u(-LOG2E):x}, {el(GV, i)}" for i in range(16)]
    fin += [f"v_exp_f32 {el(TM, i)}, {el(TM, i)}" for i in range(16)]
    fin += [f"v_add_f32 {el(TM, i)}, 1.0, {el(TM, i)}" for i in range(16)]
    fin += [f"v_rcp_f32 {el(TM, i)}, {el(TM, i)}" for i in range(16)]
    fin += [f"v_mul_f32 {el(GV, i)}, {el(GV, i)}, {el(TM, i)}" for i in range(16)]
    fin += ["s_waitcnt vmcnt(0)", "s_barrier",
           f"buffer_store_dword {vbit}, {voffA}, {sFL}, s74 offen sc1",
           f"buffer_load_dword {vpoll}, v14, {sFL}, {sH8} offen sc1"]
    if OPT["stamps"]:
        fin.append(f"s_memtime s[{STS[stamp_n[0]]}:{STS[stamp_n[0]]+1}]"); stamp_n[0] += 1
    M_ = [x for i, sv in enumerate(slots) for x in foldx(AC, sv, i == 0)]
    G_ops = [] if slots else [f"v_mov_b32 {el(AC, i)}, 0" for i in range(16)]
    for i in range(8): G_ops += [f"v_lshlrev_b32 {el(XF, 2*i)}, 16, {xr[i // 4][i % 4]}", f"v_and_b32 {el(XF, 2*i+1)}, 0xffff0000, {xr[i // 4][i % 4]}"]
    while M_ or G_ops:
        if M_: fin.append(M_.pop(0))
        fin += G_ops[:2]; G_ops = G_ops[2:]
    fin += ["s_mov_b32 s75, 0", "s_mov_b32 s76, 0", "s_branch L_got", "L_poll:",
            f"buffer_load_dword {vpoll}, v14, {sFL}, {sH8} offen sc1", "L_got:", "s_waitcnt vmcnt(0)",
            f"v_cmp_ne_u32 vcc, 0, {vpoll}", f"s_mov_b32 {sAV}, s75", "s_nop 3", f"s_andn2_b32 s75, vcc_lo, {sDONE}", "s_and_b32 s75, s75, 0xffff", f"s_or_b32 {sDONE}, {sDONE}, s75"]
    for h in range(16):
        fin += [f"s_bitcmp1_b32 s75, {h}", f"s_cbranch_scc0 L_skip{h}", f"s_mov_b32 s96, {h*PLANE}"]
        fin += [f"buffer_load_dwordx4 a[{hreg[h]+4*m}:{hreg[h]+4*m+3}], {voffR[m]}, {sR}, s96 offen sc1" for m in range(2)]
        fin.append(f"L_skip{h}:")
    fin += ["L_fold:"]
    for h in range(16):
        fin += [f"s_bitcmp1_b32 {sAV}, {h}", f"s_cbranch_scc0 L_skf{h}"] + fold(hreg[h]) + [f"L_skf{h}:"]
    fin += [f"s_cmp_eq_u32 {sDONE}, 0xffff", "s_cbranch_scc1 L_all", f"s_sleep {OPT.get('slp', 1)}", "s_add_u32 s76, s76, 1", "s_cmp_lt_u32 s76, 0x40000", "s_cbranch_scc1 L_poll", "s_branch L_end",
            "L_all:", "s_cmp_eq_u32 s75, 0", "s_cbranch_scc1 L_fini", f"s_mov_b32 {sAV}, s75", "s_mov_b32 s75, 0", "s_waitcnt vmcnt(0)", "s_branch L_fold", "L_fini:", "s_nop 7"]
    if OPT["stamps"]:
        fin.append(f"s_memtime s[{STS[stamp_n[0]]}:{STS[stamp_n[0]]+1}]"); stamp_n[0] += 1
    for m in range(2):
        fin += [f"v_fmac_f32 {el(XF, 8*m+q)}, {el(AC, 8*m+q)}, {el(GV, 8*m+q)}" for q in range(8)]
        fin += [f"v_cvt_pk_bf16_f32 v{TM[m]+q}, {el(XF, 8*m+2*q)}, {el(XF, 8*m+2*q+1)}" for q in range(4)]
        fin.append(f"buffer_store_dwordx4 {g4(TM[m])}, {voffO[m]}, {sOut}, 0 offen offset:{512*m}")
    txt += fin
    if OPT.get("nostore"): txt = [x for x in txt if not x.startswith("buffer_store")]
    if OPT.get("sc1"): txt = [x + " sc1" if x.startswith("buffer_store") else x for x in txt]
    if OPT.get("nt"): txt = [x + " nt" if x.startswith("buffer_store") else x for x in txt]
    if OPT["stamps"] or OPT.get("_st"):
        n = stamp_n[0]
        txt += ["s_waitcnt vmcnt(0)", f"s_memtime s[{STS[n]}:{STS[n]+1}]", "s_memrealtime s[26:27]", "s_waitcnt lgkmcnt(0)"]
        txt += ["s_add_u32 s28, s98, 0x8000000", "s_addc_u32 s29, s99, 0", "s_and_b32 s29, s29, 0xffff", "s_mov_b32 s30, 0x100000", "s_mov_b32 s31, 0x20000"]
        txt += ["s_lshl_b32 s3, s2, 2", f"s_add_u32 s3, s3, {sW}", "s_lshl_b32 s3, s3, 6", "v_mov_b32 v1, s3"]
        for i in range(n + 1):
            txt += [f"v_mov_b32 v2, s{([20,21,22,23,24,25,78,79][i] if (OPT.get('_st') and i < n) else STS[i])}", f"buffer_store_dword v2, v1, s[28:31], 0 offen offset:{4*i}"]
        txt += ["v_mov_b32 v2, s26", "buffer_store_dword v2, v1, s[28:31], 0 offen offset:60"]
        txt += ["v_mov_b32 v2, s100", "buffer_store_dword v2, v1, s[28:31], 0 offen offset:56", "v_mov_b32 v2, s101", "buffer_store_dword v2, v1, s[28:31], 0 offen offset:52"]
        txt = ["s_memtime s[98:99]", "s_memrealtime s[96:97]", "s_waitcnt lgkmcnt(0)", "s_mov_b32 s100, s98", "s_mov_b32 s101, s96"] + txt
    txt += ["L_end:", "s_endpgm"]
    for site, kback in slow_sites:
        if site == "p31":
            txt += [f"L_slow_{site}:", f"s_call_b64 {sRET}, L_rescale2"] + [f"v_mov_b32 v{EG[4+qs]+i}, v{SG[1, qs]+i}" for qs in range(4) for i in range(4)] + [f"s_branch L_back_{site}"]
            continue
        txt += [f"L_slow_{site}:", f"s_sub_u32 s96, {sOK}, {kback*16384}", f"s_call_b64 {sRET}, L_rescale", f"s_branch L_back_{site}"]
    def scaleO(qs, fac, tmp):
        r = []
        for dt in range(16):
            r += [f"v_accvgpr_read_b32 v{tmp+i}, a{O[dt, qs].base+i}" for i in range(4)]
            r += [f"v_mul_f32 v{tmp+i}, v{tmp+i}, {fac}" for i in range(4)]
            r += [f"v_accvgpr_write_b32 a{O[dt, qs].base+i}, v{tmp+i}" for i in range(4)]
        return r
    p0, p1, p2 = [f"v{PSB+i}" for i in range(3)]
    r = ["L_rescale:", "s_nop 15", f"v_subrev_u32 {p0}, {sXQ}, {voffSt}", f"v_bfe_u32 {p1}, {p0}, 4, 4", f"v_lshlrev_b32 {p1}, 9, {p1}",
         f"v_bfe_u32 {p2}, {p0}, 8, 1", f"v_lshl_add_u32 {p1}, {p2}, 5, {p1}", f"v_lshrrev_b32 {p2}, 9, {p0}", f"v_lshl_add_u32 {p1}, {p2}, 4, {p1}",
         f"s_and_b32 vcc_lo, {sW}, 1", "s_lshl_b32 vcc_lo, vcc_lo, 14", "s_add_u32 s96, s96, vcc_lo"]
    for sub in range(2):
        for kg in range(2):
            r += [f"buffer_load_dwordx4 {g4(PG[i])}, {p1}, {sK}, s96 offen offset:{64*(4*kg+i)}" for i in range(4)]
            r += ["s_waitcnt vmcnt(0)"]
            for i in range(4):
                ks = 4 * kg + i
                r += [f"v_mfma_f32_16x16x32_bf16 {g4(SG[sub, qs])}, {g4(PG[i])}, {qf[ks, qs]}, {g4(SG[sub, qs]) if ks else negm[qs]}" for qs in range(4)]
        if sub == 0: r.append("s_add_u32 s96, s96, 8192")
    r += ["L_rescale2:", "s_nop 15"]
    for qs in range(4):
        dlt, t0 = str(mxr), f"v{PSB+qs}"
        cur = [SG[0, qs] + i for i in range(4)] + [SG[1, qs] + i for i in range(4)]
        r += [f"v_max3_f32 {dlt}, v{cur[0]}, v{cur[1]}, v{cur[2]}", f"v_max3_f32 {dlt}, {dlt}, v{cur[3]}, v{cur[4]}",
              f"v_max3_f32 {dlt}, {dlt}, v{cur[5]}, v{cur[6]}", f"v_max3_f32 {dlt}, {dlt}, v{cur[7]}, 0"]
        for sw in ("v_permlane32_swap_b32", "v_permlane16_swap_b32"):
            r += [f"v_mov_b32 {t0}, {dlt}", "s_nop 1", f"{sw} {dlt}, {t0}", "s_nop 1", f"v_max_f32 {dlt}, {dlt}, {t0}"]
        r += [f"v_exp_f32_e64 {t0}, -{dlt}", "s_nop 0"]
        for x in cur + [negm[qs].base + i for i in range(4)]: r.append(f"v_sub_f32 v{x}, v{x}, {dlt}")
        r.append(f"v_mul_f32 {lsum[qs]}, {lsum[qs]}, {t0}")
        r += scaleO(qs, t0, PG[qs])
        r += [f"v_exp_f32 v{x}, v{x}" for x in cur] + ["s_nop 0", f"v_add_f32 {t0}, v{cur[0]}, v{cur[1]}"]
        r += [f"v_add_f32 {t0}, {t0}, v{x}" for x in cur[2:]]
        r += [f"v_cvt_pk_bf16_f32 v{PG[qs]+i}, v{cur[2*i]}, v{cur[2*i+1]}" for i in range(2)]
    r += ["s_nop 3", f"s_setpc_b64 {sRET}"]
    txt += r
    r = ["L_mfix:", "s_nop 15"]
    for q in range(2):
        dl_, fc = f"v{SG[1, 0]}", f"v{SG[1, 0]+1}"
        r += [f"v_max_f32 {dl_}, 0, {dif[q]}", f"v_exp_f32_e64 {fc}, -{dl_}", f"v_sub_f32 {dl_}, {dif[q]}, {dl_}", f"v_exp_f32 {rr_[q]}, {dl_}",
              f"v_mul_f32 {lsum[q]}, {lsum[q]}, {fc}"] + scaleO(q, fc, SG[1, 1])
    r += ["s_nop 3", "s_branch L_mback"]
    txt += r
    txt += ["L_dlate:", "s_mov_b32 s76, 0", "L_dpoll:", f"buffer_load_dword {vpoll}, off, {sDBG}, {sQ16} sc1", "s_waitcnt vmcnt(0)",
            f"v_readfirstlane_b32 s96, {vpoll}", "s_nop 3", "s_cmp_eq_u32 s96, 0xffff", "s_cbranch_scc1 L_dback", "s_sleep 8",
            "s_add_u32 s76, s76, 1", "s_cmp_lt_u32 s76, 0x40000", "s_cbranch_scc1 L_dpoll", "s_branch L_dback"]
    txt += ["L_k1_last:", "s_endpgm"]
    return txt


def k2():
    t = []
    A = t.append
    A("s_load_dwordx2 s[4:5], s[0:1], 0")
    A("s_load_dwordx2 s[6:7], s[0:1], 72")
    A("s_load_dwordx2 s[8:9], s[0:1], 88")
    A("s_cmp_ge_u32 s2, 256")
    A("s_cbranch_scc1 L2_end")
    A("v_lshrrev_b32 v1, 6, v0")
    A("v_and_b32 v2, 63, v0")
    A("v_readfirstlane_b32 s3, v1")
    A("s_mul_i32 s10, s2, 7")
    A("s_nop 2")
    A("s_add_u32 s3, s3, s10")
    A("s_lshl_b32 s10, s3, 10")
    A("v_lshl_add_u32 v3, v2, 4, s10")
    A("s_waitcnt lgkmcnt(0)")
    A("s_mov_b32 s12, s8"); A("s_and_b32 s13, s9, 0xffff"); A(f"s_mov_b32 s14, {2*DOFF}"); A("s_mov_b32 s15, 0x20000")
    for h in range(32):
        hh = (h % 2) * 16 + h // 2
        A(f"s_mov_b32 s{30+h}, {hh*PLANE}")
        A(f"buffer_load_dwordx4 v[{32+4*h}:{35+4*h}], v3, s[12:15], s{30+h} offen")
    A("s_mov_b32 s16, s4"); A("s_and_b32 s17, s5, 0xffff"); A(f"s_mov_b32 s18, {2048*896}"); A("s_mov_b32 s19, 0x20000")
    A("s_mov_b32 s20, s6"); A("s_and_b32 s21, s7, 0xffff"); A(f"s_mov_b32 s22, {2048*896}"); A("s_mov_b32 s23, 0x20000")
    A("s_lshr_b32 s24, s3, 2")
    A("s_mul_i32 s25, s24, 9363")
    A("s_lshr_b32 s25, s25, 16")
    A("s_mul_i32 s26, s25, 7")
    A("s_sub_u32 s26, s24, s26")
    A("s_bfe_u32 s27, s3, 0x10001")
    A("s_and_b32 s28, s3, 1")
    A("s_lshl_b32 s25, s25, 1")
    A("s_add_u32 s25, s25, s27")
    A(f"s_mul_i32 s25, s25, {16*896}")
    A("s_lshl_b32 s26, s26, 7")
    A("s_lshl_b32 s28, s28, 6")
    A("s_add_u32 s25, s25, s26")
    A("s_add_u32 s25, s25, s28")
    A("v_and_b32 v4, 15, v2")
    A("v_mul_u32_u24 v4, 896, v4")
    A("v_lshrrev_b32 v5, 4, v2")
    A("v_lshl_add_u32 v4, v5, 3, v4")
    A("v_add_u32 v4, s25, v4")
    A("buffer_load_dwordx2 v[24:25], v4, s[16:19], 0 offen")
    A("buffer_load_dwordx2 v[26:27], v4, s[16:19], 0 offen offset:32")
    for h in range(32):
        A(f"s_waitcnt vmcnt({33-h})")
        acc = 8 + 8 * (h % 2)
        for i in range(4):
            src = 32 + 4 * h + i
            if h < 2:
                A(f"v_lshlrev_b32 v{acc+2*i}, 16, v{src}")
                A(f"v_and_b32 v{acc+2*i+1}, 0xffff0000, v{src}")
            else:
                A(f"v_lshlrev_b32 v28, 16, v{src}")
                A(f"v_and_b32 v29, 0xffff0000, v{src}")
                A(f"v_pk_add_f32 v[{acc+2*i}:{acc+2*i+1}], v[{acc+2*i}:{acc+2*i+1}], v[28:29]")
    def rnd(b):
        for i in range(4):
            A(f"v_cvt_pk_bf16_f32 v28, v{b+2*i}, v{b+2*i+1}")
            A(f"v_lshlrev_b32 v{b+2*i}, 16, v28")
            A(f"v_and_b32 v{b+2*i+1}, 0xffff0000, v28")
    rnd(8); rnd(16)
    for i in range(8): A(f"v_mul_f32 v{32+i}, 0x{f2u(-LOG2E):x}, v{16+i}")
    for i in range(8): A(f"v_exp_f32 v{32+i}, v{32+i}")
    for i in range(8): A(f"v_add_f32 v{32+i}, 1.0, v{32+i}")
    for i in range(8): A(f"v_rcp_f32 v{32+i}, v{32+i}")
    for i in range(8): A(f"v_mul_f32 v{16+i}, v{16+i}, v{32+i}")
    rnd(16)
    for i in range(8): A(f"v_mul_f32 v{8+i}, v{8+i}, v{16+i}")
    rnd(8)
    A("s_waitcnt vmcnt(0)")
    for i in range(4):
        A(f"v_lshlrev_b32 v28, 16, v{24+i}")
        A(f"v_and_b32 v29, 0xffff0000, v{24+i}")
        A(f"v_add_f32 v{8+2*i}, v{8+2*i}, v28")
        A(f"v_add_f32 v{9+2*i}, v{9+2*i}, v29")
        A(f"v_cvt_pk_bf16_f32 v{24+i}, v{8+2*i}, v{9+2*i}")
    A("buffer_store_dwordx2 v[24:25], v4, s[20:23], 0 offen")
    A("buffer_store_dwordx2 v[26:27], v4, s[20:23], 0 offen offset:32")
    A("L2_end:")
    A("s_endpgm")
    return t


def desc(name, vg, acc, sg):
    return [f".amdhsa_kernel {name}", f"  .amdhsa_next_free_vgpr {vg}", f"  .amdhsa_next_free_sgpr {sg}", f"  .amdhsa_accum_offset {acc}",
            "  .amdhsa_group_segment_fixed_size 0", "  .amdhsa_kernarg_size 96", "  .amdhsa_user_sgpr_count 2",
            "  .amdhsa_user_sgpr_kernarg_segment_ptr 1", "  .amdhsa_system_sgpr_workgroup_id_x 1", ".end_amdhsa_kernel"]


def main():
    ref = open(f"ref.txt").read().splitlines()
    head = [l for l in ref if l.startswith(";") and "@launch" not in l and "Override launch" not in l and "grid=ceil" not in l]
    out = head + ["; @launch grid=(256,1,1) block=(256,1,1) lds=163840",
                  '.amdgcn_target "amdgcn-amd-amdhsa--gfx950"', ".text"]
    for n, body in ((f"{NAME}_kernel", k1()),):
        out += [f".globl {n}", ".p2align 8", f".type {n},@function", f"{n}:"]
        out += [("" if l.endswith(":") else "    ") + l for l in body]
    out += ['.section .rodata,"a"', ".p2align 6"] + desc(f"{NAME}_kernel", 512, 256, 102)
    open(sys.argv[1], "w").write("\n".join(out) + "\n")


main()
```
